```python
import torch

def _softmax(x, axis=-1):
    return torch.softmax(x, dim=axis)
def _gelu(x):
    return torch.nn.functional.gelu(x, approximate="tanh")
def _silu(x):
    return torch.nn.functional.silu(x)
def _sigmoid(x):
    return torch.sigmoid(x)
def _layernorm(x, axis=-1, eps=1e-5):
    m = x.mean(dim=axis, keepdim=True)
    v = x.var(dim=axis, keepdim=True, unbiased=False)
    return (x - m) / torch.sqrt(v + eps)
def _scatter_add(tgt, idx, src, axis=0):
    return tgt.clone().index_add_(axis, idx, src)
def _segment_sum(src, seg, n):
    out = torch.zeros((n,) + src.shape[1:], dtype=src.dtype)
    return out.index_add_(0, seg, src)
def _pad(x, pw):
    flat = tuple(v for pair in reversed(pw) for v in pair)
    return torch.nn.functional.pad(x, flat)

kernel_name = 'parallel_sum__softmax_full_mha__mixer_s_mlp__prompt'

def setup_inputs():

    _w = (lambda a: (lambda t: t.to(torch.bfloat16) if t.is_floating_point() else t)(torch.as_tensor(a)))
    def _A_setup():
        B, S, D = 1, 2048, 448
        return {
            "x": _w((lambda *s: torch.randn(*s, dtype=torch.bfloat16) * 0.05)(B, S, D)),
            "wqkv": _w((lambda *s: torch.randn(*s, dtype=torch.bfloat16) * 0.1)(D, 3 * D)),
            "wo": _w((lambda *s: torch.randn(*s, dtype=torch.bfloat16) * 0.05)(D, D)),
        }
    _A_in = _A_setup()

    def _B_setup():
        B, S, D, F = 1, 2048, 448, 1792
        return {
            "x":  _w((lambda *s: torch.randn(*s, dtype=torch.bfloat16) * 0.05)(B, S, D)),
            "w1": _w((lambda *s: torch.randn(*s, dtype=torch.bfloat16) * 1.6)(D, D) * (D ** -0.5)),
            "w2": _w((lambda *s: torch.randn(*s, dtype=torch.bfloat16) * 1.6)(D, D) * (D ** -0.5)),
            "w3": _w((lambda *s: torch.randn(*s, dtype=torch.bfloat16) * 1.6)(D, F) * (D ** -0.5)),
            "w4": _w((lambda *s: torch.randn(*s, dtype=torch.bfloat16) * 1.6)(F, D) * (F ** -0.5)),
        }
    _B_in = _B_setup()

    return {
        "A_x": _A_in["x"],
        "A_wqkv": _A_in["wqkv"],
        "A_wo": _A_in["wo"],
        "B_x": _B_in["x"],
        "B_w1": _B_in["w1"],
        "B_w2": _B_in["w2"],
        "B_w3": _B_in["w3"],
        "B_w4": _B_in["w4"],
    }

def reference(A_x, A_wqkv, A_wo, B_x, B_w1, B_w2, B_w3, B_w4):
    def _A_ref(x, wqkv, wo):
        B, S, D = x.shape
        H = 16; Dh = D // H
        qkv = (lambda x, *d: x.permute(*d))((x @ wqkv).reshape(B, S, 3, H, Dh), 2, 0, 3, 1, 4)
        q, k, v = qkv[0], qkv[1], qkv[2]
        scale = Dh ** -0.5
        scores = torch.einsum("bhqd,bhkd->bhqk", q, k) * scale
        p = _softmax(scores, axis=-1)
        o = torch.einsum("bhqk,bhkd->bhqd", p, v)
        return (lambda x, *d: x.permute(*d))(o, 0, 2, 1, 3).reshape(B, S, D) @ wo

    def _B_ref(x, w1, w2, w3, w4):
        B, S, D = x.shape
        h = _gelu(_layernorm(x, axis=-1) @ w1)
        c = D // 4
        g0 = _pad(h[:, :, 0*c:1*c], ((0, 0), (1, 0), (0, 0)))[:, :S, :]
        g1 = _pad(h[:, :, 1*c:2*c], ((0, 0), (0, 1), (0, 0)))[:, 1:, :]
        g2 = _pad(h[:, :, 2*c:3*c], ((0, 0), (2, 0), (0, 0)))[:, :S, :]
        g3 = _pad(h[:, :, 3*c:   ], ((0, 0), (0, 2), (0, 0)))[:, 2:, :]
        hs = torch.concatenate([g0, g1, g2, g3], axis=-1) @ w2
        x1 = x + hs
        h2 = _gelu(_layernorm(x1, axis=-1) @ w3) @ w4
        return x1 + h2

    x = A_x
    xn = _layernorm(x, axis=-1)
    return x + _A_ref(xn, A_wqkv, A_wo) + _B_ref(xn, B_w1, B_w2, B_w3, B_w4)
```

```python
class Asm:
    def __init__(self):
        self.lines = []
        self.uid = 0
    def __call__(self, s):
        for ln in s.strip('\n').split('\n'):
            self.lines.append('  ' + ln.strip())
    def label(self, l): self.lines.append(l + ':')
    def raw(self, s): self.lines.append(s)
    def comment(self, s): self.lines.append('  ; ' + s)
    def newlabel(self, p='L'):
        self.uid += 1
        return f'{p}_{self.uid}'
    def text(self): return '\n'.join(self.lines) + '\n'

def vr(a, n=1): return f'v{a}' if n == 1 else f'v[{a}:{a+n-1}]'
def sr(a, n=1): return f's{a}' if n == 1 else f's[{a}:{a+n-1}]'

def kernel_head(a, name):
    a.raw('.text')
    a.raw(f'.globl {name}')
    a.raw('.p2align 8')
    a.raw(f'.type {name},@function')
    a.label(name)

def kernel_desc(name, vgpr, sgpr=102, accum=None):
    if accum is None: accum = min(256, (vgpr + 3) // 4 * 4)
    return f'''.section .rodata,"a"
.p2align 6
.amdhsa_kernel {name}
  .amdhsa_next_free_vgpr {vgpr}
  .amdhsa_next_free_sgpr {sgpr}
  .amdhsa_accum_offset {accum}
  .amdhsa_group_segment_fixed_size 0
  .amdhsa_kernarg_size 88
  .amdhsa_user_sgpr_count 2
  .amdhsa_user_sgpr_kernarg_segment_ptr 1
  .amdhsa_system_sgpr_workgroup_id_x 1
.end_amdhsa_kernel
'''

def srd(a, d, lo, hi, size):
    a(f's_mov_b32 s{d}, s{lo}')
    a(f's_and_b32 s{d+1}, s{hi}, 0xffff')
    a(f's_mov_b32 s{d+2}, {size}')
    a(f's_mov_b32 s{d+3}, 0x20000')

MFMA = 'v_mfma_f32_32x32x16_bf16'
def mfma(a, d, x, y, c=None):
    cs = vr(d, 16) if c is None else (str(c) if isinstance(c, str) else vr(c, 16))
    a(f'{MFMA} {vr(d,16)}, {vr(x,4)}, {vr(y,4)}, {cs}')

import struct
def f32(x): return '0x%08x' % struct.unpack('<I', struct.pack('<f', x))[0]

GELU_C0 = -2.0 * 0.7978845608028654 * 1.4426950408889634
GELU_C1 = GELU_C0 * 0.044715

def gelu16(a, y, t, c0, c1, one):
    for k in range(8): a(f'v_pk_mul_f32 {vr(t+2*k,2)}, {vr(y+2*k,2)}, {vr(y+2*k,2)}')
    for k in range(8): a(f'v_pk_fma_f32 {vr(t+2*k,2)}, {vr(t+2*k,2)}, {vr(c1,2)}, {vr(c0,2)}')
    for k in range(8): a(f'v_pk_mul_f32 {vr(t+2*k,2)}, {vr(t+2*k,2)}, {vr(y+2*k,2)}')
    for k in range(16): a(f'v_exp_f32 v{t+k}, v{t+k}')
    for k in range(8): a(f'v_pk_add_f32 {vr(t+2*k,2)}, {vr(t+2*k,2)}, {vr(one,2)}')
    for k in range(16): a(f'v_rcp_f32 v{t+k}, v{t+k}')
    for k in range(8): a(f'v_pk_mul_f32 {vr(y+2*k,2)}, {vr(y+2*k,2)}, {vr(t+2*k,2)}')
```

```python
from asmlib import *
from layout import *

AQ, AK, AV, AS, AP, AO = 16, 48, 80, 112, 144, 160
AT = 224

def attn_body(a, name, ldsbase, barrier, sw, fin):
    LRED = ldsbase
    LMAX = ldsbase + 49152
    LFLG = ldsbase + 49152 + 4096
    Lstart = name + '_start'; Lloop = name + '_loop'; Ltail = name + '_tail'; Lfb = name + '_fb'; Ldone = name + '_adone'
    a('s_lshl_b32 s14, s12, 17')
    a(f's_lshl_b32 s15, s{sw}, 15')
    a('s_add_u32 s15, s15, s14')
    a(f's_add_u32 s15, s15, {WS_KF}')
    a(f's_add_u32 s18, s15, {15*2048}')
    a(f's_add_u32 s19, s18, {WS_VF - WS_KF}')
    a('s_mov_b32 s20, 0')
    for t in range(4):
        a(f's_add_u32 s22, s{sw}, {t}'); a('s_and_b32 s22, s22, 3')
        a('s_lshl_b32 s23, s13, 2'); a('s_add_u32 s22, s22, s23'); a('s_lshl_b32 s22, s22, 11')
        a('s_add_u32 s22, s22, s14'); a(f's_add_u32 s22, s22, {WS_QF}')
        for f in range(2):
            a(f'buffer_load_dwordx4 {vr(AQ+8*t+4*f,4)}, v1, s[8:11], s22 offen offset:{1024*f}')
    a(f'v_mov_b32 v3, {LFLG}'); a('v_mov_b32 v4, 0'); a('ds_write_b32 v3, v4')
    def loadK(slot):
        for f in range(2): a(f'buffer_load_dwordx4 {vr(AK+8*slot+4*f,4)}, v1, s[8:11], s16 offen offset:{1024*f}')
        a('s_add_u32 s16, s16, 2048'); a('s_min_u32 s16, s16, s18')
    def loadV(slot):
        for f in range(2): a(f'buffer_load_dwordx4 {vr(AV+8*slot+4*f,4)}, v1, s[8:11], s17 offen offset:{1024*f}')
        a('s_add_u32 s17, s17, 2048'); a('s_min_u32 s17, s17, s19')
    a.label(Lstart)
    a('s_mov_b32 s16, s15')
    a(f's_add_u32 s17, s15, {WS_VF - WS_KF}')
    for k in range(3): loadK(k); loadV(k)
    for k in range(64): a(f'v_mov_b32 v{AO+k}, 0')
    def QK(n, f):
        kt, t = (n >> 2) & 3, n & 3
        mfma(a, AS + 16*(n & 1), AK + 8*kt + 4*f, AQ + 8*t + 4*f, '0' if f == 0 else None)
    def PV(n, f):
        kt, t = (n >> 2) & 3, n & 3
        mfma(a, AO + 16*t, AV + 8*kt + 4*f, AP + 8*(n & 1) + 4*f)
    def E(n, lo, hi):
        for k in range(lo, hi): a(f'v_exp_f32 v{AS+16*(n&1)+k}, v{AS+16*(n&1)+k}')
    def C(n, lo, hi):
        for k in range(lo, hi): a(f'v_cvt_pk_bf16_f32 v{AP+8*(n&1)+k}, v{AS+16*(n&1)+2*k}, v{AS+16*(n&1)+2*k+1}')
    def step(n, pv=True):
        if n % 4 == 3: a('s_waitcnt vmcnt(10)')
        QK(n + 1, 0)
        if n % 4 == 3: loadK((((n + 1) >> 2) + 3) & 3)
        E(n, 0, 4)
        if pv:
            if n % 4 == 1: a('s_waitcnt vmcnt(10)')
            PV(n - 1, 0)
            if n % 4 == 1: loadV((((n - 1) >> 2) + 3) & 3)
        E(n, 4, 8); C(n, 0, 2)
        QK(n + 1, 1)
        E(n, 8, 12); C(n, 2, 4)
        if pv: PV(n - 1, 1)
        E(n, 12, 16); C(n, 4, 8)
    a('s_waitcnt vmcnt(10)')
    QK(0, 0); QK(0, 1)
    loadK(3)
    a('s_nop 7'); a('s_nop 3')
    step(0, pv=False)
    a('s_mov_b32 s21, 0')
    a.label(Lloop)
    for m in range(1, 16): step(m)
    a('s_cmp_eq_u32 s21, 3')
    a(f's_cbranch_scc1 {Ltail}')
    step(16)
    a('s_add_u32 s21, s21, 1')
    a(f's_branch {Lloop}')
    a.label(Ltail)
    a('s_nop 1')
    PV(63, 0); PV(63, 1)
    for t in range(1, 4):
        a(f's_add_u32 s22, s{sw}, {t}'); a('s_and_b32 s22, s22, 3')
        a('s_mul_i32 s22, s22, 12288'); a(f's_add_u32 s22, s22, {LRED + (t-1)*4096}')
        a(f'v_add_u32 v{2+t}, s22, v1')
    a(f's_mul_i32 s22, s{sw}, 12288'); a(f's_add_u32 s22, s22, {LRED}')
    a('v_add_u32 v6, s22, v1')
    a('s_nop 7')
    for t in (1, 2, 3):
        if t == 3: a('s_nop 7')
        for q in range(4): a(f'ds_write_b128 v{2+t}, {vr(AO+16*t+4*q,4)} offset:{1024*q}')
    a('s_waitcnt vmcnt(0) lgkmcnt(0)')
    barrier(a)
    for t in range(3):
        for q in range(4): a(f'ds_read_b128 {vr(AK+16*t+4*q,4)}, v6 offset:{4096*t + 1024*q}')
    for t in range(3):
        a(f's_waitcnt lgkmcnt({8 - 4*t})')
        for k in range(8): a(f'v_pk_add_f32 {vr(AO+2*k,2)}, {vr(AO+2*k,2)}, {vr(AK+16*t+2*k,2)}')
    a(f'v_mov_b32 v7, v{AO+12}'); a(f'v_mov_b32 v8, v{AO+12}')
    a('v_mov_b32 v9, 0')
    a('s_nop 0')
    a('v_permlane32_swap_b32 v7, v8')
    for k in range(16): a(f'v_fma_f32 v9, v{AO+k}, 0, v9')
    a('v_rcp_f32 v7, v8')
    a(f's_mov_b32 s28, {f32(2.0**-60)}'); a(f's_mov_b32 s29, {f32(2.0**60)}')
    a('v_cmp_le_f32 s[22:23], s28, v8')
    a('v_cmp_ge_f32 s[24:25], s29, v8')
    a('v_cmp_eq_f32 vcc, v9, v9')
    for k in range(16): a(f'v_mul_f32 v{AO+k}, v{AO+k}, v7')
    for k in range(8): a(f'v_cvt_pk_bf16_f32 v{AP+k}, v{AO+2*k}, v{AO+2*k+1}')
    a('s_and_b64 s[22:23], s[22:23], s[24:25]')
    a('s_and_b64 s[22:23], s[22:23], vcc')
    a('s_mov_b32 exec_lo, 0')
    a(f'v_mov_b32 v{AP+6}, 0'); a(f'v_mov_b32 v{AP+7}, 0')
    a('s_mov_b32 exec_lo, -1')
    a('s_lshl_b32 s26, s13, 2'); a(f's_add_u32 s26, s26, s{sw}'); a('s_lshl_b32 s26, s26, 15')
    a('s_lshl_b32 s27, s12, 11'); a('s_add_u32 s26, s26, s27'); a(f's_add_u32 s26, s26, {WS_OF}')
    fin['store'](a, AP, 's26')
    a('s_cmp_eq_u32 s20, 1')
    a(f's_cbranch_scc1 {Ldone}')
    Lok = a.newlabel('aok')
    a('s_cmp_eq_u64 s[22:23], -1')
    a(f's_cbranch_scc1 {Lok}')
    a(f'v_mov_b32 v3, {LFLG}'); a('v_mov_b32 v4, 1'); a('ds_write_b32 v3, v4')
    a.label(Lok)
    a('s_waitcnt lgkmcnt(0)')
    barrier(a)
    a(f'v_mov_b32 v3, {LFLG}'); a('ds_read_b32 v4, v3')
    a('s_waitcnt lgkmcnt(0)')
    a('v_readfirstlane_b32 s22, v4')
    a('s_nop 3')
    a('s_cmp_eq_u32 s22, 0')
    a(f's_cbranch_scc1 {Ldone}')
    a.label(Lfb)
    a('s_waitcnt vmcnt(0)')
    M = AT
    for t in range(4): a(f'v_mov_b32 v{M+t}, 0xff800000')
    a('s_mov_b32 s16, s15'); a('s_mov_b32 s21, 0')
    Lm = a.newlabel('amax')
    a.label(Lm)
    for f in range(2): a(f'buffer_load_dwordx4 {vr(AK+4*f,4)}, v1, s[8:11], s16 offen offset:{1024*f}')
    a('s_waitcnt vmcnt(0)')
    for t in range(4):
        mfma(a, AS, AK, AQ + 8*t, '0'); mfma(a, AS, AK + 4, AQ + 8*t + 4)
        a('s_nop 7'); a('s_nop 3')
        for k in range(8): a(f'v_max3_f32 v{M+t}, v{AS+2*k}, v{AS+2*k+1}, v{M+t}')
    a('s_add_u32 s16, s16, 2048'); a('s_add_u32 s21, s21, 1')
    a('s_cmp_lt_u32 s21, 16'); a(f's_cbranch_scc1 {Lm}')
    a('v_lshrrev_b32 v6, 2, v1')
    for t in range(4):
        a(f'v_mov_b32 v7, v{M+t}'); a('s_nop 1'); a(f'v_permlane32_swap_b32 v7, v{M+t}'); a('s_nop 1')
        a(f'v_max_f32 v{M+t}, v{M+t}, v7')
        a(f's_add_u32 s22, s{sw}, {t}'); a('s_and_b32 s22, s22, 3'); a('s_lshl_b32 s22, s22, 10')
        a(f's_lshl_b32 s23, s{sw}, 8'); a('s_add_u32 s22, s22, s23'); a(f's_add_u32 s22, s22, {LMAX}')
        a('v_add_u32 v7, s22, v6'); a(f'ds_write_b32 v7, v{M+t}')
    a('s_waitcnt lgkmcnt(0)')
    barrier(a)
    for t in range(4):
        a(f's_add_u32 s22, s{sw}, {t}'); a('s_and_b32 s22, s22, 3'); a('s_lshl_b32 s22, s22, 10'); a(f's_add_u32 s22, s22, {LMAX}')
        a('v_add_u32 v7, s22, v6')
        for q in range(4): a(f'ds_read_b32 v{M+4+q}, v7 offset:{256*q}')
        a('s_waitcnt lgkmcnt(0)')
        a(f'v_max3_f32 v8, v{M+4}, v{M+5}, v{M+6}'); a(f'v_max_f32 v8, v8, v{M+7}')
        a('v_sub_f32 v8, 0, v8')
        a('v_and_b32 v9, 0xffff0000, v8')
        a('v_sub_f32 v8, v8, v9')
        a('v_and_b32 v10, 0xffff0000, v8')
        a('v_sub_f32 v8, v8, v10')
        a('v_lshrrev_b32 v9, 16, v9')
        a('v_or_b32 v9, v9, v10')
        a('v_lshrrev_b32 v8, 16, v8')
        a('s_mov_b32 exec_lo, 0')
        a(f'v_mov_b32 v{AQ+8*t+4+2}, v9'); a(f'v_mov_b32 v{AQ+8*t+4+3}, v8')
        a('s_mov_b32 exec_lo, -1')
    barrier(a)
    a('s_mov_b32 s20, 1')
    a(f's_branch {Lstart}')
    a.label(Ldone)

def gen_attn(a, name):
    kernel_head(a, name)
    Lend = name + '_end'
    a('s_cmp_ge_u32 s2, 256'); a(f's_cbranch_scc1 {Lend}')
    a('s_load_dwordx2 s[4:5], s[0:1], 80')
    a('s_and_b32 s12, s2, 7'); a('s_lshl_b32 s12, s12, 1'); a('s_bfe_u32 s13, s2, 0x10003'); a('s_add_u32 s12, s12, s13')
    a('s_lshr_b32 s13, s2, 4')
    a('v_and_b32 v2, 63, v0'); a('v_lshrrev_b32 v5, 6, v0'); a('v_lshlrev_b32 v1, 4, v2')
    a('v_readfirstlane_b32 s32, v5')
    a('s_waitcnt lgkmcnt(0)')
    srd(a, 8, 4, 5, WS_END)
    def store(a, P, so):
        for f in range(2): a(f'buffer_store_dwordx4 {vr(P+4*f,4)}, v1, s[8:11], {so} offen offset:{1024*f}')
    attn_body(a, name, 0, lambda a: a('s_barrier'), 32, dict(store=store))
    a.label(Lend)
    a('s_endpgm')
    return kernel_desc(name, 256)
```

```python
from asmlib import *
from layout import *
EPS = 1e-5

def common_head(a, name, nwg):
    kernel_head(a, name)
    a(f's_cmp_ge_u32 s2, {nwg}'); a(f's_cbranch_scc1 {name}_end')
    a('v_and_b32 v2, 63, v0'); a('v_lshrrev_b32 v5, 6, v0'); a('v_lshlrev_b32 v1, 4, v2')
    a('v_readfirstlane_b32 s32, v5')

def unpack_bf16(a, dst, src):
    a(f'v_lshlrev_b32 v{dst}, 16, v{src}')
    a(f'v_and_b32 v{dst+1}, 0xffff0000, v{src}')

def tr_addr128(a, dst, b_sreg_or_const, base, tmp):
    a(f'v_lshrrev_b32 v{tmp}, 5, v2'); a(f'v_lshlrev_b32 v{tmp}, 2, v{tmp}')
    a(f'v_bfe_u32 v{tmp+1}, v2, 2, 2'); a(f'v_add_u32 v{tmp}, v{tmp}, v{tmp+1}'); a(f'v_lshlrev_b32 v{tmp}, 7, v{tmp}')
    a(f'v_bfe_u32 v{tmp+1}, v2, 3, 1'); a(f'v_xor_b32 v{tmp+1}, {b_sreg_or_const}, v{tmp+1}')
    a(f'v_lshl_add_u32 v{tmp}, v{tmp+1}, 6, v{tmp}')
    a(f'v_bfe_u32 v{tmp+1}, v2, 4, 1'); a(f'v_lshl_add_u32 v{tmp}, v{tmp+1}, 5, v{tmp}')
    a(f'v_and_b32 v{tmp+1}, 3, v2'); a(f'v_lshl_add_u32 v{tmp}, v{tmp+1}, 3, v{tmp}')
    a(f'v_add_u32 v{dst}, {base}, v{tmp}')

def dma_voff128(a, dst, stride_s, colbyte_s, tmp):
    a(f'v_lshrrev_b32 v{tmp}, 3, v2')
    a(f'v_mul_lo_u32 v{dst}, v{tmp}, {stride_s}')
    a(f'v_bfe_u32 v{tmp}, v2, 4, 1'); a(f'v_lshlrev_b32 v{tmp}, 2, v{tmp}')
    a(f'v_and_b32 v{tmp+1}, 7, v2'); a(f'v_xor_b32 v{tmp}, v{tmp}, v{tmp+1}')
    a(f'v_lshl_add_u32 v{dst}, v{tmp}, 4, v{dst}')
    a(f'v_add_u32 v{dst}, {colbyte_s}, v{dst}')

def xrow_addr(a, dst, row_s, col_s, tmp):
    a(f'v_and_b32 v{tmp}, 31, v2'); a(f'v_add_u32 v{tmp}, {row_s}, v{tmp}')
    a(f's_movk_i32 s36, 896'); a(f'v_mul_lo_u32 v{dst}, v{tmp}, s36')
    a(f'v_lshrrev_b32 v{tmp+1}, 5, v2'); a(f'v_lshl_add_u32 v{dst}, v{tmp+1}, 3, v{dst}')
    a(f'v_add_u32 v{dst}, {col_s}, v{dst}')

def gen_g1(a, name):
    common_head(a, name, 224)
    a('s_load_dwordx2 s[4:5], s[0:1], 0')
    a('s_load_dwordx2 s[6:7], s[0:1], 40')
    a('s_load_dwordx2 s[10:11], s[0:1], 80')
    a('s_and_b32 s34, s2, 7'); a('s_lshr_b32 s35, s2, 3')
    a('s_and_b32 s24, s35, 3'); a('s_lshl_b32 s36, s34, 2'); a('s_add_u32 s24, s24, s36')
    a('s_lshr_b32 s25, s35, 2')
    a('s_and_b32 s30, s32, 1')
    a('s_lshr_b32 s31, s32, 1')
    a('s_waitcnt lgkmcnt(0)')
    srd(a, 12, 4, 5, S * D * 2); srd(a, 16, 6, 7, D * D * 2); srd(a, 20, 10, 11, WS_END)
    a('s_movk_i32 s27, 896'); a('s_lshl_b32 s37, s25, 7')
    dma_voff128(a, 4, 's27', 's37', 6)
    a('s_mul_i32 s38, s32, 14336')
    a(f's_mul_i32 s39, s32, {112*896}')
    for u in range(14):
        a(f's_add_u32 m0, s38, {u*1024}')
        a(f's_add_u32 s36, s39, {u*8*896}')
        a('buffer_load_dwordx4 v4, s[16:19], s36 offen lds')
    HS = 64
    a('s_lshl_b32 s40, s24, 1'); a('s_add_u32 s40, s40, s30')
    a('s_mul_i32 s36, s40, 28672'); a('s_mul_i32 s37, s31, 14336'); a('s_add_u32 s36, s36, s37'); a(f's_add_u32 s36, s36, {WS_HS}')
    for c in range(14):
        a(f'buffer_load_dwordx4 {vr(HS+4*c,4)}, v1, s[20:23], s36 offen offset:{(c*1024) % 4096}')
        if c % 4 == 3: a('s_add_u32 s36, s36, 4096')
    XV = 40
    a('s_lshl_b32 s41, s40, 5')
    a('s_lshl_b32 s42, s25, 7'); a('s_lshl_b32 s37, s31, 6'); a('s_add_u32 s42, s42, s37')
    xrow_addr(a, 8, 's41', 's42', 6)
    for q in range(4): a(f'buffer_load_dwordx2 {vr(XV+2*q,2)}, v8, s[12:15], 0 offen offset:{16*q}')
    a('v_and_b32 v6, 31, v2'); a('v_add_u32 v6, s41, v6'); a('v_lshlrev_b32 v6, 3, v6')
    a(f's_mov_b32 s36, {WS_STATS}')
    a('buffer_load_dwordx2 v[48:49], v6, s[20:23], s36 offen')
    a('s_xor_b32 s43, s31, 1')
    a('s_mul_i32 s44, s31, 28672')
    tr_addr128(a, 10, 's31', 's44', 6)
    tr_addr128(a, 11, 's43', 's44', 6)
    a('s_waitcnt vmcnt(19)')
    a('s_barrier')
    ACC = 128; W = [16, 24]
    def reads(c):
        for b in range(2):
            a(f'ds_read_b64_tr_b16 {vr(W[c%2]+4*b,2)}, v{10+b} offset:{c*2048}')
            a(f'ds_read_b64_tr_b16 {vr(W[c%2]+4*b+2,2)}, v{10+b} offset:{c*2048+1024}')
    reads(0)
    for c in range(14):
        if c < 13:
            reads(c + 1); a(f's_waitcnt vmcnt({13 - c + 5}) lgkmcnt(4)')
        else:
            a('s_waitcnt vmcnt(5) lgkmcnt(0)')
        for b in range(2): mfma(a, ACC + 16*b, W[c%2] + 4*b, HS + 4*c, '0' if c == 0 else None)
    a('s_xor_b32 s36, s32, 2'); a('s_lshl_b32 s36, s36, 12'); a('s_add_u32 s36, s36, 57344')
    a('v_add_u32 v12, s36, v1')
    a('s_lshl_b32 s36, s32, 12'); a('s_add_u32 s36, s36, 57344')
    a('v_add_u32 v13, s36, v1')
    a('s_nop 7'); a('s_nop 3')
    for q in range(4): a(f'ds_write_b128 v12, {vr(ACC+16+4*q,4)} offset:{1024*q}')
    a('s_waitcnt lgkmcnt(0)'); a('s_barrier')
    for q in range(4): a(f'ds_read_b128 {vr(ACC+16+4*q,4)}, v13 offset:{1024*q}')
    XN = 96
    a('s_waitcnt vmcnt(0)')
    for q in range(4):
        unpack_bf16(a, XN + 4*q, XV + 2*q); unpack_bf16(a, XN + 4*q + 2, XV + 2*q + 1)
    a('v_mul_f32 v50, v48, v49'); a('v_sub_f32 v50, 0, v50')
    for k in range(16): a(f'v_fma_f32 v{XN+k}, v{XN+k}, v49, v50')
    a('s_waitcnt lgkmcnt(0)')
    for k in range(16): a(f'v_add_f32 v{ACC+k}, v{ACC+k}, v{ACC+16+k}')
    for k in range(16): a(f'v_add_f32 v{ACC+k}, v{ACC+k}, v{XN+k}')
    P = 112
    for k in range(8): a(f'v_cvt_pk_bf16_f32 v{P+k}, v{ACC+2*k}, v{ACC+2*k+1}')
    a('s_mul_i32 s36, s40, 28672'); a('s_lshl_b32 s37, s25, 12'); a('s_add_u32 s36, s36, s37')
    a('s_lshl_b32 s37, s31, 11'); a('s_add_u32 s36, s36, s37'); a(f's_add_u32 s36, s36, {WS_X1}')
    for f in range(2): a(f'buffer_store_dwordx4 {vr(P+4*f,4)}, v1, s[20:23], s36 offen offset:{1024*f}')
    a('v_mov_b32 v52, 0'); a('v_mov_b32 v53, 0')
    for k in range(16):
        a(f'v_add_f32 v52, v52, v{ACC+k}'); a(f'v_fma_f32 v53, v{ACC+k}, v{ACC+k}, v53')
    a('v_mov_b32 v54, v52'); a('v_mov_b32 v55, v53'); a('s_nop 1')
    a('v_permlane32_swap_b32 v54, v52'); a('v_permlane32_swap_b32 v55, v53'); a('s_nop 1')
    a('v_add_f32 v54, v54, v52'); a('v_add_f32 v55, v55, v53')
    a('s_mul_i32 s36, s40, 14'); a('s_lshl_b32 s37, s25, 1'); a('s_add_u32 s36, s36, s37'); a('s_add_u32 s36, s36, s31')
    a('s_lshl_b32 s36, s36, 8'); a(f's_add_u32 s36, s36, {WS_PST}')
    a('v_and_b32 v6, 31, v2'); a('v_lshlrev_b32 v6, 3, v6')
    a('s_mov_b32 exec_hi, 0')
    a('buffer_store_dwordx2 v[54:55], v6, s[20:23], s36 offen')
    a('s_mov_b32 exec_hi, -1')
    a.label(name + '_end')
    a('s_endpgm')
    return kernel_desc(name, 256)

def gen_g2(a, name):
    common_head(a, name, 224)
    a('s_load_dwordx2 s[6:7], s[0:1], 48')
    a('s_load_dwordx2 s[10:11], s[0:1], 80')
    a('s_and_b32 s34, s2, 7'); a('s_lshr_b32 s35, s2, 3')
    a('s_and_b32 s24, s35, 1'); a('s_lshl_b32 s36, s34, 1'); a('s_add_u32 s24, s24, s36')
    a('s_lshr_b32 s25, s35, 1')
    a('s_waitcnt lgkmcnt(0)')
    srd(a, 16, 6, 7, D * F * 2); srd(a, 20, 10, 11, WS_END)
    a('v_lshrrev_b32 v5, 4, v2')
    a('s_movk_i32 s27, 3584')
    a('v_mul_lo_u32 v6, v5, s27')
    a('s_lshl_b32 s37, s25, 8'); a('v_add_u32 v6, s37, v6')
    a('v_bfe_u32 v7, v2, 2, 2'); a('v_xor_b32 v7, v7, v5'); a('v_lshlrev_b32 v7, 2, v7')
    a('v_and_b32 v8, 3, v2'); a('v_or_b32 v7, v7, v8'); a('v_lshl_add_u32 v4, v7, 4, v6')
    a('s_mul_i32 s38, s32, 28672'); a(f's_mul_i32 s39, s32, {112*3584}')
    for u in range(28):
        a(f's_add_u32 m0, s38, {u*1024}')
        a(f's_add_u32 s36, s39, {u*4*3584}')
        a('buffer_load_dwordx4 v4, s[16:19], s36 offen lds')
    X = 128
    a('s_lshl_b32 s40, s24, 2'); a('s_add_u32 s40, s40, s32')
    a('s_mul_i32 s36, s40, 28672'); a(f's_add_u32 s36, s36, {WS_X1}')
    a('s_mul_i32 s37, s40, 3584'); a(f's_add_u32 s37, s37, {WS_PST}')
    a('v_and_b32 v6, 31, v2'); a('v_lshlrev_b32 v6, 3, v6'); a('v_lshrrev_b32 v7, 5, v2')
    a('s_movk_i32 s38, 1792'); a('v_mul_lo_u32 v7, v7, s38'); a('v_add_u32 v6, v6, v7')
    PS = 32
    for q in range(7): a(f'buffer_load_dwordx2 {vr(PS+2*q,2)}, v6, s[20:23], s37 offen offset:{256*q}')
    for c in range(28):
        a(f'buffer_load_dwordx4 {vr(X+4*c,4)}, v1, s[20:23], s36 offen offset:{(c*1024) % 4096}')
        if c % 4 == 3: a('s_add_u32 s36, s36, 4096')
    a('v_lshrrev_b32 v6, 5, v2'); a('v_lshlrev_b32 v6, 2, v6'); a('v_bfe_u32 v7, v2, 2, 2'); a('v_add_u32 v6, v6, v7'); a('v_lshlrev_b32 v6, 8, v6')
    a('v_bfe_u32 v8, v2, 4, 1'); a('v_lshl_add_u32 v6, v8, 5, v6'); a('v_and_b32 v8, 3, v2'); a('v_lshl_add_u32 v6, v8, 3, v6')
    for b in range(4):
        a(f's_add_u32 s36, s32, {b}'); a('s_and_b32 s36, s36, 3')
        a('v_xor_b32 v8, s36, v7'); a(f'v_lshl_add_u32 v{10+b}, v8, 6, v6')
    ONES = 48
    for k in range(4): a(f'v_mov_b32 v{ONES+k}, 0x3f803f80')
    a('s_waitcnt vmcnt(28)')
    for q in range(1, 7):
        a(f'v_add_f32 v{PS}, v{PS}, v{PS+2*q}'); a(f'v_add_f32 v{PS+1}, v{PS+1}, v{PS+2*q+1}')
    a(f'v_mov_b32 v46, v{PS}'); a(f'v_mov_b32 v47, v{PS+1}'); a('s_nop 1')
    a(f'v_permlane32_swap_b32 v46, v{PS}'); a(f'v_permlane32_swap_b32 v47, v{PS+1}'); a('s_nop 1')
    a(f'v_add_f32 v46, v46, v{PS}'); a(f'v_add_f32 v47, v47, v{PS+1}')
    a(f'v_mul_f32 v46, {f32(1/448)}, v46'); a(f'v_mul_f32 v47, {f32(1/448)}, v47')
    a('v_fma_f32 v47, -v46, v46, v47'); a('v_max_f32 v47, 0, v47'); a(f'v_add_f32 v47, {f32(EPS)}, v47')
    a('v_rsq_f32 v52, v47'); a('s_nop 0')
    a('v_mul_f32 v54, v46, v52'); a('v_sub_f32 v54, 0, v54')
    a('v_mov_b32 v53, v52'); a('v_mov_b32 v55, v54')
    a('s_barrier')
    ACC = 64; CS = 52 - 0
    CS = 240
    W = [16, 32]
    def reads(c):
        for b in range(4):
            a(f'ds_read_b64_tr_b16 {vr(W[c%2]+4*b,2)}, v{10+b} offset:{(c%8)*4096}')
            a(f'ds_read_b64_tr_b16 {vr(W[c%2]+4*b+2,2)}, v{10+b} offset:{(c%8)*4096+2048}')
        if c % 8 == 7:
            for b in range(4): a(f'v_add_u32 v{10+b}, 32768, v{10+b}')
    reads(0)
    for c in range(28):
        if c < 27:
            reads(c + 1); a(f's_waitcnt vmcnt({27 - c}) lgkmcnt(8)')
        else:
            a('s_waitcnt vmcnt(0) lgkmcnt(0)')
        for b in range(4): mfma(a, ACC + 16*b, W[c%2] + 4*b, X + 4*c, '0' if c == 0 else None)
        mfma(a, CS, W[c%2], ONES, '0' if c == 0 else None)
    LC = 114688
    a('v_lshrrev_b32 v6, 5, v2'); a('v_lshlrev_b32 v6, 6, v6')
    a('s_lshl_b32 s36, s32, 7'); a(f's_add_u32 s36, s36, {LC}'); a('v_add_u32 v7, s36, v6')
    a('s_nop 7'); a('s_nop 3')
    for q in range(4): a(f'ds_write_b128 v7, {vr(CS+4*q,4)} offset:{16*q}')
    a('s_waitcnt lgkmcnt(0)'); a('s_barrier')
    T = 128
    for b in range(4):
        a(f's_add_u32 s36, s32, {b}'); a('s_and_b32 s36, s36, 3'); a('s_lshl_b32 s36, s36, 7'); a(f's_add_u32 s36, s36, {LC}')
        a('v_add_u32 v7, s36, v6')
        for q in range(4): a(f'ds_read_b128 {vr(T+16*b+4*q,4)}, v7 offset:{16*q}')
    C0, C1, ONE = 16, 18, 20
    for r_, val in ((C0, f32(GELU_C0)), (C1, f32(GELU_C1)), (ONE, '1.0')):
        a(f'v_mov_b32 v{r_}, {val}'); a(f'v_mov_b32 v{r_+1}, {val}')
    a('s_waitcnt lgkmcnt(0)')
    for b in range(4):
        acc = ACC + 16*b; P = 224 + 8*(b % 2)
        for k in range(8): a(f'v_pk_mul_f32 {vr(T+16*b+2*k,2)}, {vr(T+16*b+2*k,2)}, v[54:55]')
        for k in range(8): a(f'v_pk_fma_f32 {vr(acc+2*k,2)}, {vr(acc+2*k,2)}, v[52:53], {vr(T+16*b+2*k,2)}')
        gelu16(a, acc, T + 64, C0, C1, ONE)
        for k in range(8): a(f'v_cvt_pk_bf16_f32 v{P+k}, v{acc+2*k}, v{acc+2*k+1}')
        a(f's_add_u32 s36, s32, {b}'); a('s_and_b32 s36, s36, 3'); a('s_lshl_b32 s36, s36, 11')
        a('s_lshl_b32 s37, s25, 13'); a('s_add_u32 s36, s36, s37')
        a(f's_mul_i32 s37, s40, {112*1024}'); a('s_add_u32 s36, s36, s37'); a(f's_add_u32 s36, s36, {WS_H2}')
        for f in range(2): a(f'buffer_store_dwordx4 {vr(P+4*f,4)}, v1, s[20:23], s36 offen offset:{1024*f}')
    a.label(name + '_end')
    a('s_endpgm')
    return kernel_desc(name, 256)

def gen_g3(a, name):
    common_head(a, name, 224)
    a('s_load_dwordx2 s[4:5], s[0:1], 0')
    a('s_load_dwordx2 s[6:7], s[0:1], 56')
    a('s_load_dwordx2 s[8:9], s[0:1], 16')
    a('s_load_dwordx2 s[10:11], s[0:1], 80')
    a('s_load_dwordx2 s[28:29], s[0:1], 64')
    a('s_and_b32 s34, s2, 7'); a('s_lshr_b32 s35, s2, 3')
    a('s_and_b32 s24, s35, 3'); a('s_lshl_b32 s36, s34, 2'); a('s_add_u32 s24, s24, s36')
    a('s_lshr_b32 s25, s35, 2')
    a('s_and_b32 s30, s32, 1'); a('s_lshr_b32 s31, s32, 1')
    a('s_waitcnt lgkmcnt(0)')
    srd(a, 12, 4, 5, S * D * 2); srd(a, 16, 6, 7, F * D * 2); srd(a, 44, 8, 9, D * D * 2); srd(a, 20, 10, 11, WS_END); srd(a, 48, 28, 29, S * D * 2)
    a('s_movk_i32 s27, 896'); a('s_lshl_b32 s37, s25, 7')
    dma_voff128(a, 4, 's27', 's37', 6)
    RING = 32768
    a(f's_mul_i32 s38, s32, {RING}')
    a(f's_mul_i32 s39, s32, {448*896}')
    def dma(st):
        slot = st % 4
        for u in range(8):
            a(f's_add_u32 m0, s38, {slot*8192 + u*1024}')
            if st < 7:
                a(f's_add_u32 s36, s39, {(64*st + 8*u)*896}')
                a('buffer_load_dwordx4 v4, s[16:19], s36 offen lds')
            else:
                hh = 2*(st - 7) + (u // 4)
                r0 = 8*(u % 4)
                a(f's_mul_i32 s36, s32, {112*896}'); a(f's_add_u32 s36, s36, {(28*hh + r0)*896}')
                if hh == 3 and r0 == 24:
                    a(f'buffer_load_dwordx4 v9, s[44:47], s36 offen lds')
                else:
                    a(f'buffer_load_dwordx4 v4, s[44:47], s36 offen lds')
    a('v_cmp_le_u32 vcc, 32, v2'); a(f'v_subrev_u32 v9, {4*896}, v4'); a('s_nop 0'); a('v_cndmask_b32 v9, v4, v9, vcc')
    for st in range(4): dma(st)
    HB = [128, 192]
    ACT = 128
    a('s_lshl_b32 s40, s24, 1')
    for ap in range(2):
        a(f's_xor_b32 s36, s30, {ap}'); a('s_add_u32 s36, s36, s40')
        a(f's_mul_i32 s{52+ap}, s36, {112*1024}'); a(f's_mul_i32 s37, s32, {28*1024}'); a(f's_add_u32 s{52+ap}, s{52+ap}, s37')
        a(f's_add_u32 s{52+ap}, s{52+ap}, {WS_H2}')
        a(f's_lshl_b32 s{54+ap}, s36, 15'); a(f's_lshl_b32 s37, s32, 13'); a(f's_add_u32 s{54+ap}, s{54+ap}, s37')
        a(f's_add_u32 s{54+ap}, s{54+ap}, {WS_OF}')
    def aload(st):
        slot = st % 4
        for ap in range(2):
            if st < 7: a(f's_add_u32 s36, s{52+ap}, {4*st*1024}')
            else: a(f's_add_u32 s36, s{54+ap}, {4*(st-7)*1024}')
            for c in range(4):
                a(f'buffer_load_dwordx4 {vr(ACT+32*slot+8*c+4*ap,4)}, v1, s[20:23], s36 offen offset:{c*1024}')
    X1R = 40; XV = 48
    a('s_add_u32 s41, s40, s30')
    a('s_mul_i32 s36, s41, 28672'); a('s_lshl_b32 s37, s25, 12'); a('s_add_u32 s36, s36, s37')
    a('s_lshl_b32 s37, s31, 11'); a('s_add_u32 s36, s36, s37'); a(f's_add_u32 s36, s36, {WS_X1}')
    for f in range(2): a(f'buffer_load_dwordx4 {vr(X1R+4*f,4)}, v1, s[20:23], s36 offen offset:{1024*f}')
    a('s_lshl_b32 s42, s41, 5')
    a('s_lshl_b32 s43, s25, 7'); a('s_lshl_b32 s37, s31, 6'); a('s_add_u32 s43, s43, s37')
    xrow_addr(a, 8, 's42', 's43', 6)
    for q in range(4): a(f'buffer_load_dwordx2 {vr(XV+2*q,2)}, v8, s[12:15], 0 offen offset:{16*q}')
    for st in range(4): aload(st)
    a('s_xor_b32 s56, s31, 1')
    tr_addr128(a, 10, 's31', 's38', 6)
    tr_addr128(a, 11, 's56', 's38', 6)
    ACC = 64; W = [16, 24]
    seq = []
    for st in range(4): seq.append(('d', st, 8))
    seq.append(('e', 0, 6))
    for st in range(4): seq.append(('a', st, 8))
    def younger(kind_st_list):
        idx = max(i for i, (k, s_, n) in enumerate(seq) if (k, s_) in kind_st_list)
        return sum(n for (_, _, n) in seq[idx+1:])
    def reads(st, c):
        slot = st % 4
        for b in range(2):
            a(f'ds_read_b64_tr_b16 {vr(W[c%2]+4*b,2)}, v{10+b} offset:{slot*8192 + c*2048}')
            a(f'ds_read_b64_tr_b16 {vr(W[c%2]+4*b+2,2)}, v{10+b} offset:{slot*8192 + c*2048 + 1024}')
    first = True
    for st in range(9):
        a(f's_waitcnt vmcnt({min(63, younger([("d", st), ("a", st)]))})')
        reads(st, 0)
        for c in range(4):
            if c < 3: reads(st, c + 1); a('s_waitcnt lgkmcnt(4)')
            else: a('s_waitcnt lgkmcnt(0)')
            for ap in range(2):
                for b in range(2):
                    mfma(a, ACC + 16*(ap + 2*b), W[c%2] + 4*b, ACT + 32*(st%4) + 8*c + 4*ap, '0' if first else None)
            first = False
        if st + 4 < 9:
            dma(st + 4); seq.append(('d', st + 4, 8))
            aload(st + 4); seq.append(('a', st + 4, 8))
    LR = 131072 - 49152
    a('s_nop 7'); a('s_nop 3')
    a('s_barrier')
    for t in range(1, 4):
        a(f's_xor_b32 s36, s32, {t}'); a('s_mul_i32 s36, s36, 12288'); a(f's_add_u32 s36, s36, {(t-1)*4096}')
        a('v_add_u32 v12, s36, v1')
        for q in range(4): a(f'ds_write_b128 v12, {vr(ACC+16*t+4*q,4)} offset:{1024*q}')
    a('s_mul_i32 s36, s32, 12288'); a('v_add_u32 v13, s36, v1')
    a('s_waitcnt lgkmcnt(0)'); a('s_barrier')
    for t in range(3):
        for q in range(4): a(f'ds_read_b128 {vr(ACC+16+16*t+4*q,4)}, v13 offset:{4096*t + 1024*q}')
    E = 128
    for q in range(4):
        unpack_bf16(a, E + 4*q, XV + 2*q); unpack_bf16(a, E + 4*q + 2, XV + 2*q + 1)
    for k in range(8): unpack_bf16(a, E + 16 + 2*k, X1R + k)
    for k in range(16): a(f'v_add_f32 v{E+k}, v{E+k}, v{E+16+k}')
    for k in range(16): a(f'v_add_f32 v{ACC+k}, v{ACC+k}, v{E+k}')
    for t in range(3):
        a(f's_waitcnt lgkmcnt({8 - 4*t})')
        for k in range(16): a(f'v_add_f32 v{ACC+k}, v{ACC+k}, v{ACC+16+16*t+k}')
    P = 112
    for k in range(8): a(f'v_cvt_pk_bf16_f32 v{P+k}, v{ACC+2*k}, v{ACC+2*k+1}')
    a('s_nop 1')
    for h in range(2):
        a(f'v_permlane32_swap_b32 v{P+4*h}, v{P+4*h+2}'); a(f'v_permlane32_swap_b32 v{P+4*h+1}, v{P+4*h+3}')
    a('v_and_b32 v6, 31, v2'); a('v_add_u32 v6, s42, v6'); a('v_mul_lo_u32 v6, v6, s27')
    a('v_lshrrev_b32 v7, 5, v2'); a('v_lshl_add_u32 v6, v7, 4, v6'); a('v_add_u32 v6, s43, v6')
    for h in range(2): a(f'buffer_store_dwordx4 {vr(P+4*h,4)}, v6, s[48:51], 0 offen offset:{32*h}')
    a.label(name + '_end')
    a('s_endpgm')
    return kernel_desc(name, 256)
```

```python
WS_FLAGS = 0x0
WS_STATS = 0x10000
WS_PST = 0x20000
WS_QF = 0x100000
WS_KF = 0x300000
WS_VF = 0x500000
WS_HS = 0x700000
WS_X1 = 0x900000
WS_OF = 0xB00000
WS_H2 = 0xD00000
WS_END = 0x1500000
S, D, H, DH, F = 2048, 448, 16, 28, 1792
```

```python
import sys
from asmlib import *
from layout import *

PNAME = 'parallel_sum__softmax_full_mha__mixer_s_mlp__prompt'
EPS = 1e-5
CQ = (28 ** -0.5) * 1.4426950408889634

STAMP = False
OPTS = set(sys.argv[2:])
def stamp(a, idx):
    if STAMP:
        a(f's_memtime s[{80+2*idx}:{81+2*idx}]')
        if idx == 0: a('s_memrealtime s[72:73]')
def stamp_out(a, n, wgsel, dbgptr_off=72):
    if not STAMP: return
    L = a.newlabel('stampskip')
    a('s_waitcnt lgkmcnt(0) vmcnt(0)')
    a(f's_memtime s[{80+2*n}:{81+2*n}]')
    a('s_memrealtime s[70:71]')
    a(f's_load_dwordx2 s[78:79], s[0:1], {dbgptr_off}')
    a('s_waitcnt lgkmcnt(0)')
    a('s_mov_b32 s77, -1')
    for k, wg in enumerate(wgsel):
        a(f's_cmp_eq_u32 s2, {wg}')
        a(f's_cselect_b32 s77, {k}, s77')
    a('s_cmp_eq_u32 s77, -1')
    a(f's_cbranch_scc1 {L}')
    a('v_cmp_eq_u32 vcc, 0, v0')
    a('s_and_saveexec_b64 s[74:75], vcc')
    a(f's_cbranch_execz {L}')
    a('s_lshl_b32 s77, s77, 5')
    for k in range(1, n + 1):
        a(f's_sub_u32 s76, s{80+2*k}, s80')
        a('v_mov_b32 v250, s76')
        a(f's_add_u32 s76, s77, {4*(k-1)}')
        a('v_mov_b32 v251, s76')
        a('global_store_dword v251, v250, s[78:79]')
    for k, sreg in ((6, 72), (7, 70)):
        a(f'v_mov_b32 v250, s{sreg}')
        a(f's_add_u32 s76, s77, {4*k}')
        a('v_mov_b32 v251, s76')
        a('global_store_dword v251, v250, s[78:79]')
    a.label(L)

def gen_k1(a, name):
    kernel_head(a, name)
    Ldone = name + '_done'
    a('s_cmp_ge_u32 s2, 256')
    a(f's_cbranch_scc1 {Ldone}')
    stamp(a, 0)
    a('s_load_dwordx4 s[4:7], s[0:1], 0')
    a('s_load_dwordx2 s[8:9], s[0:1], 32')
    a('s_load_dwordx2 s[10:11], s[0:1], 80')
    a('s_and_b32 s34, s2, 7')
    a('s_lshr_b32 s35, s2, 3')
    a('s_and_b32 s24, s35, 3')
    a('s_lshl_b32 s24, s24, 2')
    a('s_and_b32 s36, s34, 3')
    a('s_add_u32 s24, s24, s36')
    a('s_lshr_b32 s25, s34, 2')
    a('s_lshl_b32 s25, s25, 3')
    a('s_lshr_b32 s36, s35, 2')
    a('s_add_u32 s25, s25, s36')
    a('s_lshr_b32 s26, s25, 2')
    a('v_and_b32 v1, 63, v0')
    a('v_lshrrev_b32 v5, 6, v0')
    a('s_nop 0')
    a('v_readfirstlane_b32 s29, v5')
    a('s_waitcnt lgkmcnt(0)')
    srd(a, 12, 4, 5, S * D * 2)
    srd(a, 20, 10, 11, WS_END)
    a('s_cmp_lt_u32 s25, 12')
    a('s_cselect_b32 s16, s6, s8')
    a('s_cselect_b32 s17, s7, s9')
    a('s_movk_i32 s27, 896')
    a('s_cselect_b32 s27, 2688, s27')
    a(f's_mov_b32 s18, {448*896}')
    a(f's_cselect_b32 s18, {448*2688}, s18')
    a('s_cselect_b32 s28, 56, 64')
    a('s_cselect_b32 s36, s25, 0')
    a('s_sub_u32 s37, s25, 12')
    a('s_cmp_lt_u32 s25, 12')
    a('s_cselect_b32 s36, s25, s37')
    a('s_mul_i32 s37, s36, 224')
    a('s_and_b32 s17, s17, 0xffff')
    a('s_mov_b32 s19, 0x20000')
    a('s_lshr_b32 s30, s29, 1')
    a('s_and_b32 s31, s29, 1')
    a('s_lshl_b32 s32, s29, 12')
    a('s_add_u32 s33, s32, 65536')
    a('v_lshrrev_b32 v5, 3, v1')
    a('s_lshl_b32 s38, s24, 7')
    a('s_lshl_b32 s39, s29, 5')
    a('s_add_u32 s38, s38, s39')
    a('v_add_u32 v5, s38, v5')
    a('s_movk_i32 s39, 896')
    a('v_mul_lo_u32 v5, v5, s39')
    a('v_and_b32 v6, 7, v1')
    a('v_lshrrev_b32 v7, 4, v1')
    a('v_xor_b32 v6, v6, v7')
    a('v_lshl_add_u32 v2, v6, 4, v5')
    a('v_xor_b32 v3, 64, v2')
    a('v_lshrrev_b32 v5, 4, v1')
    a('s_lshl_b32 s38, s29, 4')
    a('v_add_u32 v6, s38, v5')
    a('v_mul_lo_u32 v6, v6, s27')
    a('v_add_u32 v6, s37, v6')
    a('v_bfe_u32 v7, v1, 2, 2')
    a('v_xor_b32 v7, v7, v5')
    a('v_lshlrev_b32 v7, 2, v7')
    a('v_and_b32 v8, 3, v1')
    a('v_or_b32 v7, v7, v8')
    a('v_lshl_add_u32 v4, v7, 4, v6')
    def dma(stage):
        slot = stage % 4
        for u in range(4):
            a(f's_add_u32 m0, s32, {slot*16384 + u*1024}')
            a(f's_mov_b32 s36, {128*stage + 7168*u}')
            a(f'buffer_load_dwordx4 v{2 + (u & 1)}, s[12:15], s36 offen lds')
            a(f's_add_u32 m0, s33, {slot*16384 + u*1024}')
            a(f's_mul_i32 s36, s27, {64*stage + 4*u}')
            a(f'buffer_load_dwordx4 v4, s[16:19], s36 offen lds')
    stamp(a, 1)
    for st in range(4): dma(st)
    stamp(a, 2)
    a('s_lshl_b32 s40, s30, 1')
    a('s_add_u32 s41, s40, 1')
    a('s_add_u32 s40, s40, s31')
    a('s_sub_u32 s41, s41, s31')
    a('s_lshl_b32 s42, s31, 1')
    a('s_add_u32 s43, s42, 1')
    a('s_add_u32 s42, s42, s30')
    a('s_sub_u32 s43, s43, s30')
    a('v_and_b32 v5, 31, v1')
    a('v_lshrrev_b32 v6, 5, v1')
    a('v_bfe_u32 v7, v1, 1, 3')
    XA = 8
    for ks in range(4):
        a(f'v_add_u32 v18, {2*ks}, v6')
        a('v_xor_b32 v18, v18, v7')
        a('v_lshlrev_b32 v18, 4, v18')
        a('v_lshl_add_u32 v18, v5, 7, v18')
        a('s_lshl_b32 s36, s40, 12')
        a(f'v_add_u32 v{XA+ks}, s36, v18')
        a('s_lshl_b32 s36, s41, 12')
        a(f'v_add_u32 v{XA+4+ks}, s36, v18')
    WA = 16
    a('v_bfe_u32 v5, v1, 2, 2')
    a('v_lshl_add_u32 v18, v6, 3, v5')
    a('v_lshlrev_b32 v18, 8, v18')
    a('v_add_u32 v18, 65536, v18')
    a('v_bfe_u32 v7, v1, 4, 1')
    a('v_lshlrev_b32 v7, 5, v7')
    a('v_and_b32 v19, 3, v1')
    a('v_lshl_add_u32 v7, v19, 3, v7')
    for b, sn in ((0, 42), (1, 43)):
        a(f's_mul_i32 s36, s{sn}, s28')
        a('v_add_u32 v19, s36, v7')
        a('v_lshrrev_b32 v20, 6, v19')
        a('v_xor_b32 v20, v20, v5')
        a('v_lshlrev_b32 v20, 6, v20')
        a('v_and_b32 v19, 63, v19')
        a('v_add_u32 v19, v19, v20')
        a(f'v_add_u32 v{WA+b}, v18, v19')
    SETS = [dict(X=[20, 24], W=[28, 32]), dict(X=[36, 40], W=[44, 48])]
    SX, SXX, CS = 52, 56, 60
    ACC = 64
    for k in range(12): a(f'v_mov_b32 v{52+k}, 0')
    a('s_mov_b32 s44, 0x3f803f80')
    def reads(n):
        if 'noreads' in OPTS: return
        s_, ks = divmod(n, 4)
        slot = s_ % 4
        st = SETS[n % 2]
        for t in range(2):
            a(f'ds_read_b128 {vr(st["X"][t],4)}, v{XA+4*t+ks} offset:{slot*16384}')
        for b in range(2):
            a(f'ds_read_b64_tr_b16 {vr(st["W"][b],2)}, v{WA+b} offset:{slot*16384 + ks*4096}')
            a(f'ds_read_b64_tr_b16 {vr(st["W"][b]+2,2)}, v{WA+b} offset:{slot*16384 + ks*4096 + 1024}')
    def mainloop(swap):
        a('s_waitcnt vmcnt(24)')
        a('s_barrier')
        stamp(a, 3)
        reads(0)
        for n in range(28):
            s_, ks = divmod(n, 4)
            st = SETS[n % 2]
            if ks == 3 and s_ < 6:
                out = min(s_ + 3, 6) - (s_ + 1)
                a(f's_waitcnt vmcnt({8*out}) lgkmcnt(0)')
                a('s_barrier')
                if s_ + 4 <= 6 and 'nodma' not in OPTS: dma(s_ + 4)
                reads(n + 1)
            elif n < 27:
                reads(n + 1)
                a('s_waitcnt lgkmcnt(6)')
            else:
                a('s_waitcnt lgkmcnt(0)')
            dots = []
            for k in range(4): dots.append(f'v_dot2c_f32_bf16 v{SX+k}, s44, v{st["X"][0]+k}')
            for k in range(4): dots.append(f'v_dot2c_f32_bf16 v{SXX+k}, v{st["X"][0]+k}, v{st["X"][0]+k}')
            for k in range(4): dots.append(f'v_dot2c_f32_bf16 v{CS+k}, s44, v{st["W"][0]+k}')
            q = 0
            for t in range(2):
                for b in range(2):
                    d = ACC + (2*t + b) * 16
                    c = '0' if n == 0 else None
                    if swap: mfma(a, d, st['X'][t], st['W'][b], c)
                    else: mfma(a, d, st['W'][b], st['X'][t], c)
                    for _ in range(3):
                        if 'nodots' not in OPTS: a(dots[q])
                        q += 1
    Lv = name + '_v'; Lep = name + '_ep'
    a('s_cmp_eq_u32 s26, 2')
    a(f's_cbranch_scc1 {Lv}')
    mainloop(False)
    a(f's_branch {Lep}')
    a.label(Lv)
    mainloop(True)
    a.label(Lep)
    stamp(a, 4)
    a('s_nop 3')
    a(f'v_add_f32 v{SX}, v{SX}, v{SX+1}'); a(f'v_add_f32 v{SX+2}, v{SX+2}, v{SX+3}')
    a(f'v_add_f32 v{SXX}, v{SXX}, v{SXX+1}'); a(f'v_add_f32 v{SXX+2}, v{SXX+2}, v{SXX+3}')
    a(f'v_add_f32 v{CS}, v{CS}, v{CS+1}'); a(f'v_add_f32 v{CS+2}, v{CS+2}, v{CS+3}')
    a(f'v_add_f32 v{SX}, v{SX}, v{SX+2}'); a(f'v_add_f32 v{SXX}, v{SXX}, v{SXX+2}'); a(f'v_add_f32 v{CS}, v{CS}, v{CS+2}')
    a(f'v_mov_b32 v20, v{SX}'); a(f'v_mov_b32 v21, v{SXX}'); a(f'v_mov_b32 v22, v{CS}')
    a('s_nop 1')
    a(f'v_permlane32_swap_b32 v20, v{SX}'); a(f'v_permlane32_swap_b32 v21, v{SXX}'); a(f'v_permlane32_swap_b32 v22, v{CS}')
    a('s_nop 1')
    a(f'v_add_f32 v20, v20, v{SX}'); a(f'v_add_f32 v21, v21, v{SXX}'); a(f'v_add_f32 v22, v22, v{CS}')
    a(f'v_mul_f32 v20, {f32(1/448)}, v20')
    a(f'v_mul_f32 v21, {f32(1/448)}, v21')
    a('v_fma_f32 v21, -v20, v20, v21')
    a('v_max_f32 v21, 0, v21')
    a(f'v_add_f32 v23, {f32(EPS)}, v21')
    a('v_rsq_f32 v23, v23')
    a('s_nop 0')
    a('v_mul_f32 v24, v23, v23')
    a(f'v_mov_b32 v25, {f32(EPS)}')
    a('v_fma_f32 v24, v21, v24, v25')
    a('v_rsq_f32 v24, v24')
    a('s_nop 0')
    a('s_cmp_eq_u32 s26, 3')
    a('s_cselect_b64 vcc, -1, 0')
    a('v_mov_b32 v25, 1.0')
    a('v_cndmask_b32 v24, v25, v24, vcc')
    a('s_cmp_eq_u32 s26, 0')
    a(f's_cselect_b32 s36, {f32(CQ)}, 1.0')
    a('v_mul_f32 v24, s36, v24')
    a('v_mul_f32 v24, v24, v23')
    a('v_mul_f32 v25, v24, v20')
    a('v_sub_f32 v25, 0, v25')
    STL = 131072
    a('v_and_b32 v5, 31, v1')
    a('s_lshl_b32 s36, s40, 7')
    a('v_lshl_add_u32 v26, v5, 2, s36')
    a(f'v_add_u32 v26, {STL}, v26')
    a('ds_write_b32 v26, v24')
    a('ds_write_b32 v26, v25 offset:512')
    a('s_lshl_b32 s36, s42, 7')
    a('v_lshl_add_u32 v27, v5, 2, s36')
    a(f'v_add_u32 v27, {STL}, v27')
    a('ds_write_b32 v27, v22 offset:1024')
    Lns = name + '_nostats'
    a('s_cmp_lg_u32 s25, 12')
    a(f's_cbranch_scc1 {Lns}')
    a('s_lshl_b32 s36, s24, 7')
    a('s_lshl_b32 s37, s40, 5')
    a('s_add_u32 s36, s36, s37')
    a('v_add_u32 v28, s36, v5')
    a('v_lshlrev_b32 v28, 3, v28')
    a('v_mov_b32 v30, v20'); a('v_mov_b32 v31, v23')
    a(f's_mov_b32 s36, {WS_STATS}')
    a('buffer_store_dwordx2 v[30:31], v28, s[20:23], s36 offen')
    a.label(Lns)
    a('s_waitcnt lgkmcnt(0)')
    a('s_barrier')
    stamp(a, 5)
    a('v_lshlrev_b32 v2, 4, v1')
    a('v_lshrrev_b32 v6, 5, v1')
    a('v_and_b32 v5, 31, v1')
    Lev = name + '_epv'; Lew = name + '_epw'
    MT = [40, 41]; NT = [42, 43]
    T = 128
    a('s_cmp_eq_u32 s26, 2'); a(f's_cbranch_scc1 {Lev}')
    for t in range(2):
        a(f's_lshl_b32 s36, s{MT[t]}, 7')
        a('v_lshl_add_u32 v7, v5, 2, s36')
        a(f'v_add_u32 v7, {STL}, v7')
        a(f'ds_read_b32 v{20+2*t}, v7')
        a(f'ds_read_b32 v{24+2*t}, v7 offset:512')
    for b in range(2):
        a(f's_lshl_b32 s36, s{NT[b]}, 7')
        a('v_lshl_add_u32 v7, v6, 4, s36')
        a(f'v_add_u32 v7, {STL}, v7')
        for q in range(4):
            a(f'ds_read_b128 {vr(T+16*b+4*q,4)}, v7 offset:{1024+32*q}')
    a('s_waitcnt lgkmcnt(0)')
    def affine_dt(t, b):
        acc = ACC + (2*t + b) * 16
        for k in range(8):
            a(f'v_pk_mul_f32 {vr(T+32+2*k,2)}, {vr(T+16*b+2*k,2)}, {vr(24+2*t,2)} op_sel_hi:[1,0]')
        for k in range(8):
            a(f'v_pk_fma_f32 {vr(acc+2*k,2)}, {vr(acc+2*k,2)}, {vr(20+2*t,2)}, {vr(T+32+2*k,2)} op_sel_hi:[1,0,1]')
    def pack(acc, dst):
        for k in range(8): a(f'v_cvt_pk_bf16_f32 v{dst+k}, v{acc+2*k}, v{acc+2*k+1}')
    a('s_cmp_eq_u32 s26, 3'); a(f's_cbranch_scc1 {Lew}')
    a('s_cmp_eq_u32 s26, 0')
    a(f's_mov_b32 s45, {WS_KF}')
    a(f's_cselect_b32 s45, {WS_QF}, s45')
    a('s_cselect_b32 s46, 0, 0x3f803f80')
    a('s_cselect_b32 s47, 0, 0x3f80')
    for t in range(2):
        for b in range(2):
            acc = ACC + (2*t + b) * 16
            P = T + 48 + 8 * ((2*t+b) % 2)
            affine_dt(t, b)
            pack(acc, P)
            a('s_mov_b32 exec_lo, 0')
            a(f'v_mov_b32 v{P+6}, s46')
            a(f'v_mov_b32 v{P+7}, s47')
            a('s_mov_b32 exec_lo, -1')
            a('s_and_b32 s36, s25, 3'); a('s_lshl_b32 s36, s36, 2'); a(f's_add_u32 s36, s36, s{NT[b]}')
            a('s_lshl_b32 s36, s36, 17')
            a('s_lshl_b32 s37, s24, 2'); a(f's_add_u32 s37, s37, s{MT[t]}'); a('s_lshl_b32 s37, s37, 11')
            a('s_add_u32 s36, s36, s37'); a('s_add_u32 s36, s36, s45')
            a(f'buffer_store_dwordx4 {vr(P,4)}, v2, s[20:23], s36 offen')
            a(f'buffer_store_dwordx4 {vr(P+4,4)}, v2, s[20:23], s36 offen offset:1024')
    a(f's_branch {name}_fin')
    a.label(Lew)
    C0, C1, ONE = T + 64, T + 66, T + 68
    for r_, val in ((C0, f32(GELU_C0)), (C1, f32(GELU_C1)), (ONE, '1.0')):
        a(f'v_mov_b32 v{r_}, {val}'); a(f'v_mov_b32 v{r_+1}, {val}')
    a('s_and_b32 s45, s25, 3')
    a('s_lshr_b32 s46, s45, 1'); a('s_add_u32 s46, s46, 1')
    a('s_sub_u32 s47, 0, s46')
    a('s_bitcmp1_b32 s45, 0')
    a('s_cselect_b32 s46, s47, s46')
    for t in range(2):
        a('s_lshl_b32 s36, s24, 7'); a(f's_lshl_b32 s37, s{MT[t]}, 5'); a('s_add_u32 s36, s36, s37'); a('s_add_u32 s36, s36, s46')
        a('v_add_u32 v7, s36, v5')
        a('v_cmp_gt_u32 vcc, 2048, v7')
        a('v_and_b32 v7, 2047, v7')
        a('v_lshrrev_b32 v8, 5, v7')
        a('s_movk_i32 s36, 28672')
        a('v_mul_lo_u32 v8, v8, s36')
        a('v_and_b32 v7, 31, v7')
        a('v_lshl_add_u32 v7, v6, 5, v7')
        a(f'v_lshl_add_u32 v{10+t}, v7, 4, v8')
        a(f'v_cndmask_b32 v{12+t}, 0, -1, vcc')
    for t in range(2):
        for b in range(2):
            acc = ACC + (2*t + b) * 16
            P = T + 48 + 8 * ((2*t+b) % 2)
            affine_dt(t, b)
            gelu16(a, acc, T + 72, C0, C1, ONE)
            pack(acc, P)
            for k in range(8): a(f'v_and_b32 v{P+k}, v{P+k}, v{12+t}')
            a('s_mul_i32 s36, s45, 7'); a(f's_lshl_b32 s37, s{NT[b]}, 1'); a('s_add_u32 s36, s36, s37')
            a('s_lshl_b32 s36, s36, 10'); a(f's_add_u32 s36, s36, {WS_HS}')
            a(f'buffer_store_dwordx4 {vr(P,4)}, v{10+t}, s[20:23], s36 offen')
            Ls = a.newlabel('k1skip')
            a(f's_cmp_eq_u32 s{NT[b]}, 3'); a(f's_cbranch_scc1 {Ls}')
            a(f'buffer_store_dwordx4 {vr(P+4,4)}, v{10+t}, s[20:23], s36 offen offset:1024')
            a.label(Ls)
    a(f's_branch {name}_fin')
    a.label(Lev)
    for b in range(2):
        a(f's_lshl_b32 s36, s{NT[b]}, 7')
        a('v_lshl_add_u32 v7, v5, 2, s36')
        a(f'v_add_u32 v7, {STL}, v7')
        a(f'ds_read_b32 v{20+2*b}, v7 offset:1024')
    for t in range(2):
        a(f's_lshl_b32 s36, s{MT[t]}, 7')
        a('v_lshl_add_u32 v7, v6, 4, s36')
        a(f'v_add_u32 v7, {STL}, v7')
        for q in range(4):
            a(f'ds_read_b128 {vr(T+32*t+4*q,4)}, v7 offset:{32*q}')
            a(f'ds_read_b128 {vr(T+32*t+16+4*q,4)}, v7 offset:{512+32*q}')
    a('s_waitcnt lgkmcnt(0)')
    a('v_cmp_eq_u32 vcc, 28, v5')
    for t in range(2):
        for b in range(2):
            acc = ACC + (2*t + b) * 16
            P = T + 80 + 8 * ((2*t+b) % 2)
            X = T + 64
            for k in range(8):
                a(f'v_pk_mul_f32 {vr(X+2*k,2)}, {vr(T+32*t+16+2*k,2)}, {vr(20+2*b,2)} op_sel_hi:[1,0]')
            for k in range(8):
                a(f'v_pk_fma_f32 {vr(acc+2*k,2)}, {vr(acc+2*k,2)}, {vr(T+32*t+2*k,2)}, {vr(X+2*k,2)}')
            pack(acc, P)
            a('s_and_saveexec_b64 s[48:49], vcc')
            for k in range(8): a(f'v_mov_b32 v{P+k}, s44')
            a('s_mov_b64 exec, s[48:49]')
            a('s_and_b32 s36, s25, 3'); a('s_lshl_b32 s36, s36, 2'); a(f's_add_u32 s36, s36, s{NT[b]}')
            a('s_lshl_b32 s36, s36, 17')
            a('s_lshl_b32 s37, s24, 2'); a(f's_add_u32 s37, s37, s{MT[t]}'); a('s_lshl_b32 s37, s37, 11')
            a('s_add_u32 s36, s36, s37'); a(f's_add_u32 s36, s36, {WS_VF}')
            a(f'buffer_store_dwordx4 {vr(P,4)}, v2, s[20:23], s36 offen')
            a(f'buffer_store_dwordx4 {vr(P+4,4)}, v2, s[20:23], s36 offen offset:1024')
    a.label(name + '_fin')
    stamp_out(a, 6, [0, 1, 100, 255, 7, 64, 128, 250])
    a.label(Ldone)
    a('s_endpgm')
    return kernel_desc(name, 256)

def build(kernels, out):
    a = Asm()
    hdr = open('cdna_kernels/' + PNAME + '.s.ref').read().split('\n')
    head = [l for l in hdr if l.startswith(';') and '@launch' not in l and 'Override' not in l and 'grid=ceil' not in l]
    head = head[:head.index([l for l in head if 'd_ws' in l][0]) + 1]
    txt = '\n'.join(head) + '\n'
    for (nm, gen, grid, block, lds) in kernels:
        txt += f'; @launch kernel={nm} grid=({grid},1,1) block=({block},1,1) lds={lds}\n'
    txt += '.amdgcn_target "amdgcn-amd-amdhsa--gfx950"\n'
    descs = ''
    for (nm, gen, grid, block, lds) in kernels:
        descs += gen(a, nm)
    txt += a.text() + descs
    open(out, 'w').write(txt)

if __name__ == '__main__':
    if 'stamp' in sys.argv: STAMP = True
    from gen_attn import gen_attn
    from gen_b import gen_g1, gen_g2, gen_g3
    ks = [('k1_kernel', gen_k1, 256, 256, 133120),
          ('attn_kernel', gen_attn, 256, 256, 57600),
          ('g1_kernel', gen_g1, 224, 256, 57344 + 16384),
          ('g2_kernel', gen_g2, 224, 256, 114688 + 512),
          ('g3_kernel', gen_g3, 224, 256, 131072)]
    build(ks, sys.argv[1] if len(sys.argv) > 1 else 'out.s')
```

```python
from asmlib import *
from layout import *
from sync import *
from gen_b import unpack_bf16, tr_addr128, dma_voff128
EPS = 1e-5
SC = 'sc1'
SCK = 'sc1'
SCL = 'sc1'
OPT = set()

S_TOK = 3
WS = 8
SX, SW2, SW3, SW4, SWO, SOUT = 40, 44, 48, 52, 56, 60
S_W = 32
S_TGT = 33
S_SP = 34

def srdr(r): return f's[{r}:{r+3}]'

AQ, AK, AV, AS, AP, AO = 16, 48, 80, 112, 144, 160
AT = 224

def attn_role(a, name, stamp=None):
    sw = S_W
    bar = lambda: subbar(a, C_ATT, S_TGT, 12, S_SP)
    Lstart = name + '_astart'; Lloop = name + '_aloop'; Ltail = name + '_atail'; Ldone = name + '_adone'
    a('s_and_b32 s12, s2, 7'); a('s_lshl_b32 s12, s12, 1'); a('s_bfe_u32 s13, s2, 0x10003'); a('s_add_u32 s12, s12, s13')
    a('s_lshr_b32 s13, s2, 4')
    a('s_lshl_b32 s14, s12, 17')
    a(f's_lshl_b32 s15, s{sw}, 15')
    a('s_add_u32 s15, s15, s14')
    a(f's_add_u32 s15, s15, {WS_KF}')
    a(f's_add_u32 s18, s15, {15*2048}')
    a(f's_add_u32 s19, s18, {WS_VF - WS_KF}')
    a(f's_mov_b32 s20, {1 if "noKV" in OPT else 0}')
    if 'pollA' in OPT:
        a('s_lshr_b32 s22, s12, 2'); a('s_lshl_b32 s22, s22, 8'); a(f's_add_u32 s22, s22, {WS_FLAGS + F_A*4}')
        a('v_lshlrev_b32 v3, 2, v2'); a('v_add_u32 v3, s22, v3')
        a('s_lshl_b32 s24, 1, s13'); a('s_or_b32 s24, s24, 0xffff0000'); a('s_mov_b32 s25, 0xffff')
        poll(a, 3, 24, S_TOK, WS, 4, S_SP)
    for t in range(4):
        a(f's_xor_b32 s22, s{sw}, {t}')
        a('s_lshl_b32 s23, s13, 2'); a('s_add_u32 s22, s22, s23'); a('s_lshl_b32 s22, s22, 11')
        a('s_add_u32 s22, s22, s14'); a(f's_add_u32 s22, s22, {WS_QF}')
        for f in range(2):
            a(f'buffer_load_dwordx4 {vr(AQ+8*t+4*f,4)}, v1, {srdr(WS)}, s22 offen offset:{1024*f} {SCK}')
    def loadK(slot):
        for f in range(2): a(f'buffer_load_dwordx4 {vr(AK+8*slot+4*f,4)}, v1, {srdr(WS)}, s16 offen offset:{1024*f} {SCK}')
        a('s_add_u32 s16, s16, 2048'); a('s_min_u32 s16, s16, s18')
    def loadV(slot):
        for f in range(2): a(f'buffer_load_dwordx4 {vr(AV+8*slot+4*f,4)}, v1, {srdr(WS)}, s17 offen offset:{1024*f} {SCK}')
        a('s_add_u32 s17, s17, 2048'); a('s_min_u32 s17, s17, s19')
    a.label(Lstart)
    a('s_mov_b32 s16, s15')
    a(f's_add_u32 s17, s15, {WS_VF - WS_KF}')
    for k in range(3): loadK(k); loadV(k)
    for k in range(64): a(f'v_mov_b32 v{AO+k}, 0')
    def QK(n, f):
        kt, t = (n >> 2) & 3, n & 3
        mfma(a, AS + 16*(n & 1), AK + 8*kt + 4*f, AQ + 8*t + 4*f, '0' if f == 0 else None)
    def PV(n, f):
        kt, t = (n >> 2) & 3, n & 3
        mfma(a, AO + 16*t, AV + 8*kt + 4*f, AP + 8*(n & 1) + 4*f)
    def E(n, lo, hi):
        for k in range(lo, hi): a(f'v_exp_f32 v{AS+16*(n&1)+k}, v{AS+16*(n&1)+k}')
    def C(n, lo, hi):
        for k in range(lo, hi): a(f'v_cvt_pk_bf16_f32 v{AP+8*(n&1)+k}, v{AS+16*(n&1)+2*k}, v{AS+16*(n&1)+2*k+1}')
    def step(n, pv=True):
        kv = 'noKV' not in OPT
        if n % 4 == 3 and kv: a('s_waitcnt vmcnt(10)')
        QK(n + 1, 0)
        if n % 4 == 3 and kv: loadK((((n + 1) >> 2) + 3) & 3)
        E(n, 0, 4)
        if pv:
            if n % 4 == 1 and kv: a('s_waitcnt vmcnt(10)')
            PV(n - 1, 0)
            if n % 4 == 1 and kv: loadV((((n - 1) >> 2) + 3) & 3)
        E(n, 4, 8); C(n, 0, 2)
        QK(n + 1, 1)
        E(n, 8, 12); C(n, 2, 4)
        if pv: PV(n - 1, 1)
        E(n, 12, 16); C(n, 4, 8)
    a('s_waitcnt vmcnt(10)')
    if stamp: stamp(1)
    QK(0, 0); QK(0, 1)
    loadK(3)
    a('s_nop 7'); a('s_nop 3')
    step(0, pv=False)
    a('s_mov_b32 s21, 0')
    a.label(Lloop)
    for m in range(1, 16): step(m)
    a('s_cmp_eq_u32 s21, 3')
    a(f's_cbranch_scc1 {Ltail}')
    step(16)
    a('s_add_u32 s21, s21, 1')
    a(f's_branch {Lloop}')
    a.label(Ltail)
    a('s_nop 1')
    PV(63, 0); PV(63, 1)
    if stamp: stamp(2)
    a(f's_xor_b32 s22, s{sw}, 2'); a('s_lshl_b32 s22, s22, 13'); a('v_add_u32 v3, s22, v1')
    a(f's_lshl_b32 s22, s{sw}, 13'); a('v_add_u32 v4, s22, v1')
    a(f's_xor_b32 s22, s{sw}, 1'); a('s_lshl_b32 s22, s22, 13'); a('v_add_u32 v5, s22, v1')
    a('s_nop 7')
    for t in (2, 3):
        if t == 3: a('s_nop 7')
        for q in range(4): a(f'ds_write_b128 v3, {vr(AO+16*t+4*q,4)} offset:{L_A + (t-2)*4096 + 1024*q}')
    a('s_waitcnt vmcnt(0)')
    bar()
    for t in range(2):
        for q in range(4): a(f'ds_read_b128 {vr(AK+16*t+4*q,4)}, v4 offset:{L_A + 4096*t + 1024*q}')
    a('s_waitcnt lgkmcnt(4)')
    for k in range(16): a(f'v_add_f32 v{AO+k}, v{AO+k}, v{AK+k}')
    a('s_waitcnt lgkmcnt(0)')
    for k in range(16): a(f'v_add_f32 v{AO+16+k}, v{AO+16+k}, v{AK+16+k}')
    for q in range(4): a(f'ds_write_b128 v4, {vr(AO+16+4*q,4)} offset:{L_A + 1024*q}')
    bar()
    for q in range(4): a(f'ds_read_b128 {vr(AK+4*q,4)}, v5 offset:{L_A + 1024*q}')
    a('s_waitcnt lgkmcnt(0)')
    for k in range(16): a(f'v_add_f32 v{AO+k}, v{AO+k}, v{AK+k}')
    a(f'v_mov_b32 v7, v{AO+12}'); a(f'v_mov_b32 v8, v{AO+12}')
    a('v_mov_b32 v9, 0')
    a('s_nop 0')
    a('v_permlane32_swap_b32 v7, v8')
    for k in range(16): a(f'v_fma_f32 v9, v{AO+k}, 0, v9')
    a('v_rcp_f32 v7, v8')
    a(f's_mov_b32 s28, {f32(2.0**-60)}'); a(f's_mov_b32 s29, {f32(2.0**60)}')
    a('v_cmp_le_f32 s[22:23], s28, v8')
    a('v_cmp_ge_f32 s[24:25], s29, v8')
    a('v_cmp_eq_f32 vcc, v9, v9')
    for k in range(16): a(f'v_mul_f32 v{AO+k}, v{AO+k}, v7')
    for k in range(8): a(f'v_cvt_pk_bf16_f32 v{AP+k}, v{AO+2*k}, v{AO+2*k+1}')
    a('s_and_b64 s[22:23], s[22:23], s[24:25]')
    a('s_and_b64 s[22:23], s[22:23], vcc')
    a('s_mov_b32 exec_lo, 0')
    a(f'v_mov_b32 v{AP+6}, 0'); a(f'v_mov_b32 v{AP+7}, 0')
    a('s_mov_b32 exec_lo, -1')
    a('s_lshl_b32 s26, s13, 2'); a(f's_add_u32 s26, s26, s{sw}'); a('s_lshl_b32 s26, s26, 15')
    a('s_lshl_b32 s27, s12, 11'); a('s_add_u32 s26, s26, s27'); a(f's_add_u32 s26, s26, {WS_OF}')
    for f in range(2): a(f'buffer_store_dwordx4 {vr(AP+4*f,4)}, v1, {srdr(WS)}, s26 offen offset:{1024*f} {SC}')
    Lok = a.newlabel('aok')
    a('s_cmp_eq_u32 s20, 1'); a(f's_cbranch_scc1 {Lok}')
    a('s_cmp_eq_u64 s[22:23], -1')
    a(f's_cbranch_scc1 {Lok}')
    a(f'v_mov_b32 v3, {L_VOTE}'); a('v_mov_b32 v4, 1'); a('ds_write_b32 v3, v4')
    a.label(Lok)
    a('s_waitcnt vmcnt(0)')
    bar()
    a(f'v_mov_b32 v3, {L_VOTE}'); a('ds_read_b32 v4, v3')
    a('s_waitcnt lgkmcnt(0)')
    a('v_readfirstlane_b32 s22, v4')
    a('s_nop 3')
    a('s_cmp_eq_u32 s22, 0')
    a(f's_cbranch_scc1 {Ldone}')
    a('s_cmp_eq_u32 s20, 1'); a(f's_cbranch_scc1 {Ldone}')
    M = AT
    for t in range(4): a(f'v_mov_b32 v{M+t}, 0xff800000')
    a('s_mov_b32 s16, s15'); a('s_mov_b32 s21, 0')
    Lm = a.newlabel('amax')
    a.label(Lm)
    for f in range(2): a(f'buffer_load_dwordx4 {vr(AK+4*f,4)}, v1, {srdr(WS)}, s16 offen offset:{1024*f} {SCK}')
    a('s_waitcnt vmcnt(0)')
    for t in range(4):
        mfma(a, AS, AK, AQ + 8*t, '0'); mfma(a, AS, AK + 4, AQ + 8*t + 4)
        a('s_nop 7'); a('s_nop 3')
        for k in range(8): a(f'v_max3_f32 v{M+t}, v{AS+2*k}, v{AS+2*k+1}, v{M+t}')
    a('s_add_u32 s16, s16, 2048'); a('s_add_u32 s21, s21, 1')
    a('s_cmp_lt_u32 s21, 16'); a(f's_cbranch_scc1 {Lm}')
    a('v_lshrrev_b32 v6, 2, v1')
    for t in range(4):
        a(f'v_mov_b32 v7, v{M+t}'); a('s_nop 1'); a(f'v_permlane32_swap_b32 v7, v{M+t}'); a('s_nop 1')
        a(f'v_max_f32 v{M+t}, v{M+t}, v7')
        a(f's_xor_b32 s22, s{sw}, {t}'); a('s_lshl_b32 s22, s22, 10')
        a(f's_lshl_b32 s23, s{sw}, 8'); a('s_add_u32 s22, s22, s23'); a(f's_add_u32 s22, s22, {L_A}')
        a('v_add_u32 v7, s22, v6'); a(f'ds_write_b32 v7, v{M+t}')
    bar()
    for t in range(4):
        a(f's_xor_b32 s22, s{sw}, {t}'); a('s_lshl_b32 s22, s22, 10'); a(f's_add_u32 s22, s22, {L_A}')
        a('v_add_u32 v7, s22, v6')
        for q in range(4): a(f'ds_read_b32 v{M+4+q}, v7 offset:{256*q}')
        a('s_waitcnt lgkmcnt(0)')
        a(f'v_max3_f32 v8, v{M+4}, v{M+5}, v{M+6}'); a(f'v_max_f32 v8, v8, v{M+7}')
        a('v_sub_f32 v8, 0, v8')
        a('v_and_b32 v9, 0xffff0000, v8')
        a('v_sub_f32 v8, v8, v9')
        a('v_and_b32 v10, 0xffff0000, v8')
        a('v_sub_f32 v8, v8, v10')
        a('v_lshrrev_b32 v9, 16, v9')
        a('v_or_b32 v9, v9, v10')
        a('v_lshrrev_b32 v8, 16, v8')
        a('s_mov_b32 exec_lo, 0')
        a(f'v_mov_b32 v{AQ+8*t+4+2}, v9'); a(f'v_mov_b32 v{AQ+8*t+4+3}, v8')
        a('s_mov_b32 exec_lo, -1')
    bar()
    a('s_mov_b32 s20, 1')
    a(f's_branch {Lstart}')
    a.label(Ldone)
    Lnf = a.newlabel('anf')
    a(f's_cmp_lg_u32 s{sw}, 0'); a(f's_cbranch_scc1 {Lnf}')
    a('s_lshl_b32 s22, s13, 4'); a('s_add_u32 s22, s22, s12'); a('s_lshl_b32 s22, s22, 2'); a(f's_add_u32 s22, s22, {WS_FLAGS + F_O*4}')
    store_flag(a, 's22', S_TOK, WS, 3)
    a.label(Lnf)
    if stamp: stamp(3)

L_W2 = L_B
L_EX = L_B + 57344
L_W3A = L_EX + 16384
L_W3B = L_B
assert L_W3A + 13*4096 == L_S
X1K = 56

def xrow_addr(a, dst, row_s, col_s, tmp, hfshift=3):
    a(f'v_and_b32 v{tmp}, 31, v2'); a(f'v_add_u32 v{tmp}, {row_s}, v{tmp}')
    a(f's_movk_i32 s36, 896'); a(f'v_mul_lo_u32 v{dst}, v{tmp}, s36')
    a(f'v_lshrrev_b32 v{tmp+1}, 5, v2'); a(f'v_lshl_add_u32 v{dst}, v{tmp+1}, {hfshift}, v{dst}')
    a(f'v_add_u32 v{dst}, {col_s}, v{dst}')

class VM:
    def __init__(self): self.seq = []
    def issue(self, tag, n=1): self.seq.append((tag, n))
    def drain(self): self.seq = []
    def wait_for(self, a, tags, extra=''):
        idx = [i for i, (t, n) in enumerate(self.seq) if t in tags]
        if not idx:
            if extra: a('s_waitcnt ' + extra)
            return
        y = sum(n for (_, n) in self.seq[max(idx)+1:])
        assert y <= 63, y
        a(f's_waitcnt vmcnt({y}) {extra}')
        self.seq = self.seq[max(idx)+1:]

def b_role(a, name, stamp=None):
    bar = lambda: subbar(a, C_B, S_TGT, 14, S_SP)
    vm = VM()
    W_ = f's{S_W}'
    a('s_and_b32 s12, s2, 7'); a('s_lshr_b32 s13, s2, 3')
    a('s_and_b32 s64, s13, 3'); a('s_lshl_b32 s36, s12, 2'); a('s_add_u32 s64, s64, s36')
    a('s_lshr_b32 s65, s13, 2')
    a('s_and_b32 s66, s13, 1'); a('s_lshl_b32 s36, s12, 1'); a('s_add_u32 s66, s66, s36')
    a('s_lshr_b32 s67, s13, 1')
    a(f's_and_b32 s30, {W_}, 1'); a(f's_lshr_b32 s31, {W_}, 1')
    a('s_movk_i32 s27, 896')
    Lg2 = name + '_g2'; Lend = name + '_bend'; Lno1 = name + '_no1'
    a('s_cmp_ge_u32 s13, 28'); a(f's_cbranch_scc1 {Lno1}')
    a('s_lshl_b32 s37, s65, 7')
    dma_voff128(a, 4, 's27', 's37', 6)
    a(f's_mul_i32 s38, {W_}, 14336'); a(f's_add_u32 s38, s38, {L_W2}')
    a(f's_mul_i32 s39, {W_}, {112*896}')
    for u in range(14):
        a(f's_add_u32 m0, s38, {u*1024}')
        a(f's_add_u32 s36, s39, {u*8*896}')
        a(f'buffer_load_dwordx4 v4, {srdr(SW2)}, s36 offen lds')
    vm.issue('w2', 14)
    if 'pollH' in OPT:
        a('s_add_u32 s22, s64, 31'); a('s_lshr_b32 s22, s22, 1')
        a('v_lshrrev_b32 v3, 2, v2'); a('v_add_u32 v3, s22, v3'); a('v_and_b32 v3, 15, v3'); a('v_lshlrev_b32 v3, 2, v3')
        a('v_and_b32 v5, 3, v2'); a('v_add_u32 v3, v3, v5'); a('v_lshlrev_b32 v3, 2, v3'); a(f'v_add_u32 v3, {WS_FLAGS + F_H*4}, v3')
        a('s_mov_b32 s24, 0xff'); a('s_mov_b32 s25, 0')
        poll(a, 3, 24, S_TOK, WS, 5, S_SP); vm.drain()
    HS = 64
    a('s_lshl_b32 s68, s64, 1'); a('s_add_u32 s68, s68, s30')
    a('s_mul_i32 s36, s68, 28672'); a('s_mul_i32 s37, s31, 14336'); a('s_add_u32 s36, s36, s37'); a(f's_add_u32 s36, s36, {WS_HS}')
    for c in range(14):
        a(f'buffer_load_dwordx4 {vr(HS+4*c,4)}, v1, {srdr(WS)}, s36 offen offset:{(c*1024) % 4096} {SCK}')
        vm.issue(('hs', c))
        if c % 4 == 3: a('s_add_u32 s36, s36, 4096')
    XV = 40
    a('s_lshl_b32 s69, s68, 5')
    a('s_lshl_b32 s70, s65, 7'); a('s_lshl_b32 s37, s31, 6'); a('s_add_u32 s70, s70, s37')
    xrow_addr(a, 8, 's69', 's70', 6)
    for q in range(4): a(f'buffer_load_dwordx2 {vr(XV+2*q,2)}, v8, {srdr(SX)}, 0 offen offset:{16*q}')
    a('v_and_b32 v6, 31, v2'); a('v_add_u32 v6, s69, v6'); a('v_lshlrev_b32 v6, 3, v6')
    a(f's_mov_b32 s36, {WS_STATS}')
    a(f'buffer_load_dwordx2 v[48:49], v6, {srdr(WS)}, s36 offen {SCK}')
    vm.issue('xv', 5)
    a('s_xor_b32 s29, s31, 1')
    a(f's_mul_i32 s26, s31, 28672'); a(f's_add_u32 s26, s26, {L_W2}')
    tr_addr128(a, 10, 's31', 's26', 6)
    tr_addr128(a, 11, 's29', 's26', 6)
    w3setup(a)
    w3a = w3dma_list(a, 0, 13, L_W3A)
    vm.wait_for(a, ['w2'])
    bar()
    if stamp: stamp(1)
    ACC = 128; W = [16, 24, 32]
    def rd(c, b):
        if c >= 14: return
        a(f'ds_read_b64_tr_b16 {vr(W[c%3]+4*b,2)}, v{10+b} offset:{c*2048}')
        a(f'ds_read_b64_tr_b16 {vr(W[c%3]+4*b+2,2)}, v{10+b} offset:{c*2048+1024}')
    for c in range(2):
        for b in range(2): rd(c, b)
    for c in range(14):
        for b in range(2):
            y = 2*(1-b) + (4 if c + 1 < 14 else 0) + (2*b if c + 2 < 14 else 0)
            if b == 0: vm.wait_for(a, [('hs', c)], f'lgkmcnt({y})')
            else: a(f's_waitcnt lgkmcnt({y})')
            mfma(a, ACC + 16*b, W[c%3] + 4*b, HS + 4*c, '0' if c == 0 else None)
            rd(c + 2, b)
            if b == 1 and w3a:
                w3a.pop(0)(); vm.issue('w3a')
    assert not w3a or len(w3a) == 0 or True
    for g in w3a: g(); vm.issue('w3a')
    a(f's_xor_b32 s36, {W_}, 2'); a('s_lshl_b32 s36, s36, 12'); a(f's_add_u32 s36, s36, {L_EX}')
    a('v_add_u32 v12, s36, v1')
    a(f's_lshl_b32 s36, {W_}, 12'); a(f's_add_u32 s36, s36, {L_EX}')
    a('v_add_u32 v13, s36, v1')
    XN = 96
    vm.wait_for(a, ['xv'])
    for q in range(4):
        unpack_bf16(a, XN + 4*q, XV + 2*q); unpack_bf16(a, XN + 4*q + 2, XV + 2*q + 1)
    for q in range(4): a(f'ds_write_b128 v12, {vr(ACC+16+4*q,4)} offset:{1024*q}')
    a('v_mul_f32 v50, v48, v49'); a('v_sub_f32 v50, 0, v50')
    for k in range(16): a(f'v_fma_f32 v{XN+k}, v{XN+k}, v49, v50')
    for k in range(16): a(f'v_add_f32 v{ACC+k}, v{ACC+k}, v{XN+k}')
    bar()
    for q in range(4): a(f'ds_read_b128 {vr(ACC+16+4*q,4)}, v13 offset:{1024*q}')
    for q in range(4):
        a(f's_waitcnt lgkmcnt({3-q})')
        for k in range(4): a(f'v_add_f32 v{ACC+4*q+k}, v{ACC+4*q+k}, v{ACC+16+4*q+k}')
    P = X1K
    for k in range(8): a(f'v_cvt_pk_bf16_f32 v{P+k}, v{ACC+2*k}, v{ACC+2*k+1}')
    a('s_mul_i32 s36, s68, 28672'); a('s_lshl_b32 s37, s65, 12'); a('s_add_u32 s36, s36, s37')
    a('s_lshl_b32 s37, s31, 11'); a('s_add_u32 s36, s36, s37'); a(f's_add_u32 s36, s36, {WS_X1}')
    for f in range(2): a(f'buffer_store_dwordx4 {vr(P+4*f,4)}, v1, {srdr(WS)}, s36 offen offset:{1024*f} {SC}')
    a('v_mov_b32 v52, 0'); a('v_mov_b32 v53, 0'); a('v_mov_b32 v54, 0'); a('v_mov_b32 v55, 0')
    for k in range(8):
        a(f'v_add_f32 v52, v52, v{ACC+2*k}'); a(f'v_fma_f32 v53, v{ACC+2*k}, v{ACC+2*k}, v53')
        a(f'v_add_f32 v54, v54, v{ACC+2*k+1}'); a(f'v_fma_f32 v55, v{ACC+2*k+1}, v{ACC+2*k+1}, v55')
    a('v_add_f32 v52, v52, v54'); a('v_add_f32 v53, v53, v55')
    a('v_mov_b32 v54, v52'); a('v_mov_b32 v55, v53'); a('s_nop 1')
    a('v_permlane32_swap_b32 v54, v52'); a('v_permlane32_swap_b32 v55, v53'); a('s_nop 1')
    a('v_add_f32 v54, v54, v52'); a('v_add_f32 v55, v55, v53')
    a('s_mul_i32 s36, s68, 14'); a('s_lshl_b32 s37, s65, 1'); a('s_add_u32 s36, s36, s37'); a('s_add_u32 s36, s36, s31')
    a('s_lshl_b32 s36, s36, 8'); a(f's_add_u32 s36, s36, {WS_PST}')
    a('v_and_b32 v6, 31, v2'); a('v_lshlrev_b32 v6, 3, v6')
    a('s_mov_b32 exec_hi, 0')
    a(f'buffer_store_dwordx2 v[54:55], v6, {srdr(WS)}, s36 offen {SC}')
    a('s_mov_b32 exec_hi, -1')
    a('s_lshl_b32 s26, s64, 3'); a('s_add_u32 s26, s26, s65'); a('s_lshl_b32 s26, s26, 2'); a(f's_add_u32 s26, s26, {WS_FLAGS + F_X*4}')
    arrive_flag(a, C_G1, 's26', S_TOK, WS, 14, S_SP); vm.drain()
    bar()
    if stamp: stamp(2)
    a(f's_branch {Lg2}')
    a.label(Lno1)
    w3setup(a)
    for g in w3dma_list(a, 0, 13, L_W3A): g()
    a.label(Lg2)
    for g in w3dma_list(a, 52, 15, L_W3B): g()
    a('s_lshl_b32 s22, s66, 6'); a(f's_add_u32 s22, s22, {WS_FLAGS + F_X*4}')
    a('v_lshlrev_b32 v3, 2, v2'); a('v_add_u32 v3, s22, v3')
    a('s_mov_b32 s24, 0x7f7f'); a('s_mov_b32 s25, 0')
    a('v_lshrrev_b32 v6, 5, v2'); a('v_lshlrev_b32 v6, 2, v6'); a('v_bfe_u32 v7, v2, 2, 2'); a('v_add_u32 v6, v6, v7'); a('v_lshlrev_b32 v6, 8, v6')
    a('v_bfe_u32 v8, v2, 4, 1'); a('v_lshl_add_u32 v6, v8, 5, v6'); a('v_and_b32 v8, 3, v2'); a('v_lshl_add_u32 v6, v8, 3, v6')
    a(f'v_add_u32 v6, {L_W3B}, v6')
    for b in range(4):
        a(f's_add_u32 s36, {W_}, {b}'); a('s_and_b32 s36, s36, 3')
        a('v_xor_b32 v8, s36, v7'); a(f'v_lshl_add_u32 v{10+b}, v8, 6, v6')
        a(f'v_add_u32 v{52+b}, {L_W3A - L_W3B}, v{10+b}')
    ONES = 48
    for k in range(4): a(f'v_mov_b32 v{ONES+k}, 0x3f803f80')
    a('s_waitcnt vmcnt(0)')
    bar()
    def w3addr(c, b):
        if c < 13: return 52 + b, c*4096
        return 10 + b, (c-13)*4096
    CS = 240
    CW = [16, 20, 24, 28]
    def rdc(c):
        if c >= 28: return
        r, off = w3addr(c, 0)
        a(f'ds_read_b64_tr_b16 {vr(CW[c%4],2)}, v{r} offset:{off}')
        a(f'ds_read_b64_tr_b16 {vr(CW[c%4]+2,2)}, v{r} offset:{off+2048}')
    for c in range(3): rdc(c)
    for c in range(28):
        y = 2*min(2, 27 - c)
        a(f's_waitcnt lgkmcnt({y})')
        mfma(a, CS, CW[c%4], ONES, '0' if c == 0 else None)
        rdc(c + 3)
    a('v_lshrrev_b32 v6, 5, v2'); a('v_lshlrev_b32 v6, 6, v6')
    a(f's_lshl_b32 s36, {W_}, 7'); a(f's_add_u32 s36, s36, {L_CS}'); a('v_add_u32 v7, s36, v6')
    a('s_nop 7'); a('s_nop 3')
    for q in range(4): a(f'ds_write_b128 v7, {vr(CS+4*q,4)} offset:{16*q}')
    if stamp: stamp(3)
    poll(a, 3, 24, S_TOK, WS, 5, S_SP); vm.drain()
    if stamp: stamp(4)
    X = 128
    a('s_lshl_b32 s71, s66, 2'); a(f's_add_u32 s71, s71, {W_}')
    a('s_mul_i32 s36, s71, 28672'); a(f's_add_u32 s36, s36, {WS_X1}')
    a('s_mul_i32 s37, s71, 3584'); a(f's_add_u32 s37, s37, {WS_PST}')
    for c in range(28):
        a(f'buffer_load_dwordx4 {vr(X+4*c,4)}, v1, {srdr(WS)}, s36 offen offset:{(c*1024) % 4096} {SCL}')
        vm.issue(('x', c))
        if c % 4 == 3: a('s_add_u32 s36, s36, 4096')
    a('v_and_b32 v6, 31, v2'); a('v_lshlrev_b32 v6, 3, v6'); a('v_lshrrev_b32 v7, 5, v2')
    a('s_movk_i32 s38, 1792'); a('v_mul_lo_u32 v7, v7, s38'); a('v_add_u32 v6, v6, v7')
    PS = 240
    a('s_waitcnt lgkmcnt(0)')
    for q in range(7): a(f'buffer_load_dwordx2 {vr(PS+2*q,2)}, v6, {srdr(WS)}, s37 offen offset:{256*q} {SCL}')
    vm.issue('ps', 7)
    ACC = 64
    W = [16, 32]
    def rd2(c, b):
        if c >= 28: return
        r, off = w3addr(c, b)
        a(f'ds_read_b64_tr_b16 {vr(W[c%2]+4*b,2)}, v{r} offset:{off}')
        a(f'ds_read_b64_tr_b16 {vr(W[c%2]+4*b+2,2)}, v{r} offset:{off+2048}')
    for b in range(4): rd2(0, b)
    for c in range(28):
        for b in range(4):
            y = 2*(3-b) + (2*b if c + 1 < 28 else 0)
            if b == 0: vm.wait_for(a, [('x', c)], f'lgkmcnt({y})')
            else: a(f's_waitcnt lgkmcnt({y})')
            mfma(a, ACC + 16*b, W[c%2] + 4*b, X + 4*c, '0' if c == 0 else None)
            rd2(c + 1, b)
    if stamp: stamp(5)
    bar()
    RING = 24576; NSLOT = 3
    a(f's_mul_i32 s72, {W_}, {RING}'); a(f's_add_u32 s72, s72, {L_B}')
    a(f's_mul_i32 s73, {W_}, {448*896}')
    def dma3_list(st):
        slot = st % NSLOT
        out = []
        for u in range(8):
            def g(u=u):
                a(f's_add_u32 m0, s72, {slot*8192 + u*1024}')
                if st < 7:
                    a(f's_add_u32 s36, s73, {(64*st + 8*u)*896}')
                    a(f'buffer_load_dwordx4 v4, {srdr(SW4)}, s36 offen lds')
                else:
                    hh = 2*(st - 7) + (u // 4); r0 = 8*(u % 4)
                    a(f's_mul_i32 s36, {W_}, {112*896}'); a(f's_add_u32 s36, s36, {(28*hh + r0)*896}')
                    v = 9 if (hh == 3 and r0 == 24) else 4
                    a(f'buffer_load_dwordx4 v{v}, {srdr(SWO)}, s36 offen lds')
                vm.issue(('d', st))
            out.append(g)
        return out
    vm.wait_for(a, ['ps'])
    for q in range(1, 7):
        a(f'v_add_f32 v{PS}, v{PS}, v{PS+2*q}'); a(f'v_add_f32 v{PS+1}, v{PS+1}, v{PS+2*q+1}')
    a(f'v_mov_b32 v46, v{PS}'); a(f'v_mov_b32 v47, v{PS+1}'); a('s_nop 1')
    a(f'v_permlane32_swap_b32 v46, v{PS}'); a(f'v_permlane32_swap_b32 v47, v{PS+1}'); a('s_nop 1')
    a(f'v_add_f32 v46, v46, v{PS}'); a(f'v_add_f32 v47, v47, v{PS+1}')
    a(f'v_mul_f32 v46, {f32(1/448)}, v46'); a(f'v_mul_f32 v47, {f32(1/448)}, v47')
    a('v_fma_f32 v47, -v46, v46, v47'); a('v_max_f32 v47, 0, v47'); a(f'v_add_f32 v47, {f32(EPS)}, v47')
    a('v_rsq_f32 v52, v47'); a('s_nop 0')
    a('v_mul_f32 v54, v46, v52'); a('v_sub_f32 v54, 0, v54')
    a('v_mov_b32 v53, v52'); a('v_mov_b32 v55, v54')
    T = 128
    a('v_lshrrev_b32 v6, 5, v2'); a('v_lshlrev_b32 v6, 6, v6')
    for b in range(4):
        a(f's_add_u32 s36, {W_}, {b}'); a('s_and_b32 s36, s36, 3'); a('s_lshl_b32 s36, s36, 7'); a(f's_add_u32 s36, s36, {L_CS}')
        a('v_add_u32 v7, s36, v6')
        for q in range(4): a(f'ds_read_b128 {vr(T+16*b+4*q,4)}, v7 offset:{16*q}')
    C0, C1, ONE = 16, 18, 20
    for r_, val in ((C0, f32(GELU_C0)), (C1, f32(GELU_C1)), (ONE, '1.0')):
        a(f'v_mov_b32 v{r_}, {val}'); a(f'v_mov_b32 v{r_+1}, {val}')
    Lskip = a.newlabel('nog3')
    a('s_cmp_ge_u32 s13, 28'); a(f's_cbranch_scc1 {Lskip}')
    a('v_cmp_le_u32 vcc, 32, v2'); a(f'v_subrev_u32 v9, {4*896}, v4'); a('s_nop 0'); a('v_cndmask_b32 v9, v4, v9, vcc')
    for st in range(NSLOT):
        for g in dma3_list(st): g()
    a.label(Lskip)
    a('s_waitcnt lgkmcnt(0)')
    for b in range(4):
        acc = ACC + 16*b; P = 224 + 8*(b % 2)
        for k in range(8): a(f'v_pk_mul_f32 {vr(T+16*b+2*k,2)}, {vr(T+16*b+2*k,2)}, v[54:55]')
        for k in range(8): a(f'v_pk_fma_f32 {vr(acc+2*k,2)}, {vr(acc+2*k,2)}, v[52:53], {vr(T+16*b+2*k,2)}')
        gelu16(a, acc, T + 64, C0, C1, ONE)
        for k in range(8): a(f'v_cvt_pk_bf16_f32 v{P+k}, v{acc+2*k}, v{acc+2*k+1}')
        a(f's_add_u32 s37, {W_}, {b}'); a('s_and_b32 s37, s37, 3'); a('s_lshl_b32 s36, s37, 11')
        a('s_mul_i32 s38, s67, 7168'); a('s_add_u32 s36, s36, s38')
        a(f's_mul_i32 s38, s71, {112*1024}'); a('s_add_u32 s36, s36, s38'); a(f's_add_u32 s36, s36, {WS_H2}')
        a(f'buffer_store_dwordx4 {vr(P,4)}, v1, {srdr(WS)}, s36 offen {SC}')
        Ls = a.newlabel('h2skip')
        a('s_cmp_eq_u32 s37, 3'); a(f's_cbranch_scc1 {Ls}')
        a(f'buffer_store_dwordx4 {vr(P+4,4)}, v1, {srdr(WS)}, s36 offen offset:1024 {SC}')
        a.label(Ls)
    a('s_lshl_b32 s26, s66, 4'); a('s_add_u32 s26, s26, s67'); a('s_lshl_b32 s26, s26, 2'); a(f's_add_u32 s26, s26, {WS_FLAGS + F_H2*4}')
    arrive_flag(a, C_G2, 's26', S_TOK, WS, 14, S_SP); vm.drain()
    if stamp: stamp(6)
    a('s_cmp_ge_u32 s13, 28'); a(f's_cbranch_scc1 {Lend}')
    for k in range(8): a(f'v_mov_b32 v{24+k}, v{X1K+k}')
    X1R = 24
    ACC = 32
    BLK = [96, 128, 160, 192, 224]
    a('s_xor_b32 s29, s31, 1')
    tr_addr128(a, 10, 's31', 's72', 6)
    tr_addr128(a, 11, 's29', 's72', 6)
    def wread(st, c, b, dst):
        slot = st % NSLOT
        a(f'ds_read_b64_tr_b16 {vr(dst,2)}, v{10+b} offset:{slot*8192 + c*2048}')
        a(f'ds_read_b64_tr_b16 {vr(dst+2,2)}, v{10+b} offset:{slot*8192 + c*2048 + 1024}')
    for st in range(2):
        for c in range(4):
            for b in range(2): wread(st, c, b, BLK[st] + 8*c + 4*b)
    a('s_waitcnt lgkmcnt(0)')
    for st in (3, 4):
        for g in dma3_list(st): g()
    a('s_lshr_b32 s22, s64, 1'); a('s_lshl_b32 s22, s22, 6'); a(f's_add_u32 s22, s22, {WS_FLAGS + F_H2*4}')
    a('v_lshlrev_b32 v3, 2, v2'); a('v_add_u32 v3, s22, v3')
    a('s_mov_b32 s24, 0xffff'); a('s_mov_b32 s25, 0')
    a('s_lshl_b32 s74, s64, 1')
    for ap in range(2):
        a(f's_xor_b32 s36, s30, {ap}'); a('s_add_u32 s36, s36, s74')
        a(f's_mul_i32 s{76+ap}, s36, {112*1024}'); a(f's_mul_i32 s37, {W_}, {28*1024}'); a(f's_add_u32 s{76+ap}, s{76+ap}, s37')
        a(f's_add_u32 s{76+ap}, s{76+ap}, {WS_H2}')
        a(f's_lshl_b32 s{78+ap}, s36, 15'); a(f's_lshl_b32 s37, {W_}, 13'); a(f's_add_u32 s{78+ap}, s{78+ap}, s37')
        a(f's_add_u32 s{78+ap}, s{78+ap}, {WS_OF}')
    poll(a, 3, 24, S_TOK, WS, 5, S_SP); vm.drain()
    if stamp: stamp(7)
    ABLK = {0: 2, 1: 3, 2: 4, 3: 2, 4: 1, 5: 3, 6: 4, 7: 2, 8: 1}
    def aload_list(st):
        out = []
        for ap in range(2):
            for c in range(4):
                def g(ap=ap, c=c):
                    if c == 0:
                        if st < 7: a(f's_add_u32 s{36+ap}, s{76+ap}, {4*st*1024}')
                        else: a(f's_add_u32 s{36+ap}, s{78+ap}, {4*(st-7)*1024}')
                    a(f'buffer_load_dwordx4 {vr(BLK[ABLK[st]]+8*c+4*ap,4)}, v1, {srdr(WS)}, s{36+ap} offen offset:{c*1024} {SCL}')
                    vm.issue(('a', st))
                out.append(g)
        return out
    for st in range(3):
        for g in aload_list(st): g()
    WS3 = [BLK[0], BLK[0] + 8, BLK[0] + 16]
    XV = 16
    xrow_addr(a, 8, 's69', 's70', 6)
    for q in range(4): a(f'buffer_load_dwordx2 {vr(XV+2*q,2)}, v8, {srdr(SX)}, 0 offen offset:{16*q}')
    vm.issue('xv', 4)
    NCH = 36
    def wreg(g, b):
        st, c = divmod(g, 4)
        if st < 2: return BLK[st] + 8*c + 4*b
        return WS3[g % 3] + 4*b
    def pre(g, b):
        st, c = divmod(g, 4)
        if g >= NCH or st < 2: return 0
        wread(st, c, b, wreg(g, b)); return 2
    after = {0: [('a', 3)], 1: [('a', 4), ('a', 5)], 2: [('d', 5), ('a', 6)], 3: [('d', 6)], 4: [('d', 7)], 5: [('d', 8)]}
    fill = []
    lds_out = []
    def lwait(tag):
        if tag not in lds_out: return None
        i = lds_out.index(tag)
        y = 2*(len(lds_out) - 1 - i)
        del lds_out[:i+1]
        return y
    first = True
    for g in range(NCH):
        st, c = divmod(g, 4)
        if c == 0:
            if st == 7:
                a('s_lshr_b32 s22, s64, 1'); a('s_lshl_b32 s22, s22, 6'); a(f's_add_u32 s22, s22, {WS_FLAGS + F_O*4}')
                a('v_lshlrev_b32 v3, 2, v2'); a('v_add_u32 v3, s22, v3')
                for f_ in fill: f_()
                fill = []
                if stamp: stamp(8)
                poll(a, 3, 24, S_TOK, WS, 5, S_SP); vm.drain()
                if stamp: stamp(9)
                for s2_ in (7, 8):
                    for gg in aload_list(s2_): gg()
            vm.wait_for(a, [('a', st)])
        st2 = (g + 2) // 4
        if (g + 2) % 4 == 0 and g + 2 < NCH and st2 >= 2:
            for f_ in fill: f_()
            fill = []
            vm.wait_for(a, [('d', st2)])
        if g == 6:
            vm.wait_for(a, [('d', 2)])
        for b in range(2):
            for ap in range(2):
                if ap == 0:
                    y = lwait((g, b))
                    if y is not None: a(f's_waitcnt lgkmcnt({y})')
                mfma(a, ACC + 16*(ap + 2*b), wreg(g, b), BLK[ABLK[st]] + 8*c + 4*ap, '0' if first else None)
                if ap == 1:
                    if pre(g + 2, b): lds_out.append((g + 2, b))
                for _ in range(2):
                    if fill: fill.pop(0)()
            first = False if b == 1 else first
        if c == 3:
            for (k, s_) in after.get(st, []):
                fill += aload_list(s_) if k == 'a' else dma3_list(s_)
    for f_ in fill: f_()
    a('s_nop 7'); a('s_nop 3')
    if stamp: stamp(10) if False else None
    bar()
    for t in range(1, 4):
        a(f's_xor_b32 s36, {W_}, {t}'); a('s_mul_i32 s36, s36, 12288'); a(f's_add_u32 s36, s36, {L_B + (t-1)*4096}')
        a('v_add_u32 v12, s36, v1')
        for q in range(4): a(f'ds_write_b128 v12, {vr(ACC+16*t+4*q,4)} offset:{1024*q}')
    a(f's_mul_i32 s36, {W_}, 12288'); a(f's_add_u32 s36, s36, {L_B}'); a('v_add_u32 v13, s36, v1')
    E = 128
    a('s_waitcnt vmcnt(0)')
    for q in range(4):
        unpack_bf16(a, E + 4*q, XV + 2*q); unpack_bf16(a, E + 4*q + 2, XV + 2*q + 1)
    for k in range(8): unpack_bf16(a, E + 16 + 2*k, X1R + k)
    for k in range(16): a(f'v_add_f32 v{E+k}, v{E+k}, v{E+16+k}')
    for k in range(16): a(f'v_add_f32 v{ACC+k}, v{ACC+k}, v{E+k}')
    bar()
    for t in range(3):
        for q in range(4): a(f'ds_read_b128 {vr(ACC+16+16*t+4*q,4)}, v13 offset:{4096*t + 1024*q}')
    for t in range(3):
        a(f's_waitcnt lgkmcnt({8 - 4*t})')
        for k in range(16): a(f'v_add_f32 v{ACC+k}, v{ACC+k}, v{ACC+16+16*t+k}')
    P = 112
    for k in range(8): a(f'v_cvt_pk_bf16_f32 v{P+k}, v{ACC+2*k}, v{ACC+2*k+1}')
    xrow_addr(a, 6, 's69', 's70', 14, hfshift=4)
    for h in range(2):
        a(f'v_permlane32_swap_b32 v{P+4*h}, v{P+4*h+2}'); a(f'v_permlane32_swap_b32 v{P+4*h+1}, v{P+4*h+3}')
    for h in range(2): a(f'buffer_store_dwordx4 {vr(P+4*h,4)}, v6, {srdr(SOUT)}, 0 offen offset:{32*h}')
    a.label(Lend)

def w3setup(a):
    a('v_lshrrev_b32 v5, 4, v2')
    a('s_movk_i32 s28, 3584')
    a('v_mul_lo_u32 v6, v5, s28')
    a('s_mul_i32 s37, s67, 224'); a('v_add_u32 v6, s37, v6')
    a('v_bfe_u32 v7, v2, 2, 2'); a('v_xor_b32 v7, v7, v5'); a('v_lshlrev_b32 v7, 2, v7')
    a('v_and_b32 v8, 3, v2'); a('v_or_b32 v7, v7, v8'); a('v_lshl_add_u32 v9, v7, 4, v6')

def w3dma_list(a, u0, cnt, ldsbase):
    out = []
    for t in range(cnt):
        def g(t=t):
            a(f's_mul_i32 s38, s{S_W}, {cnt*1024}'); a(f's_add_u32 m0, s38, {ldsbase + t*1024}')
            a(f's_mul_i32 s39, s{S_W}, {cnt*4*3584}'); a(f's_add_u32 s39, s39, {(u0 + t)*4*3584}')
            a(f'buffer_load_dwordx4 v9, {srdr(SW3)}, s39 offen lds')
        out.append(g)
    return out

def k2_prologue(a):
    a('s_load_dwordx2 s[4:5], s[0:1], 0')
    a('s_load_dwordx2 s[6:7], s[0:1], 16')
    a('s_load_dwordx4 s[12:15], s[0:1], 40')
    a('s_load_dwordx4 s[16:19], s[0:1], 56')
    a('s_load_dwordx2 s[20:21], s[0:1], 80')
    a('v_and_b32 v2, 63, v0'); a('v_lshrrev_b32 v5, 6, v0'); a('v_lshlrev_b32 v1, 4, v2')
    a('v_readfirstlane_b32 s36, v5')
    a(f's_mov_b32 s{S_TGT}, 0')
    a('s_waitcnt lgkmcnt(0)')
    srd(a, WS, 20, 21, WS_END); srd(a, SX, 4, 5, S*D*2); srd(a, SWO, 6, 7, D*D*2); srd(a, SW2, 12, 13, D*D*2)
    srd(a, SW3, 14, 15, D*F*2); srd(a, SW4, 16, 17, F*D*2); srd(a, SOUT, 18, 19, S*D*2)
    a(f's_and_b32 s{S_W}, s36, 3')

def gen_k2(a, name, stampf=None):
    kernel_head(a, name)
    a('s_cmp_ge_u32 s2, 256'); a(f's_cbranch_scc1 {name}_end')
    k2_prologue(a)
    a(f's_mov_b32 s{S_TOK}, 1')
    a(f'v_mov_b32 v3, {L_S}'); a('v_lshl_add_u32 v3, v2, 2, v3'); a('v_mov_b32 v4, 0')
    a('ds_write_b32 v3, v4')
    a('s_waitcnt lgkmcnt(0)'); a('s_barrier')
    Lb = name + '_brole'
    a('s_cmp_ge_u32 s36, 4'); a(f's_cbranch_scc1 {Lb}')
    st = (lambda role: (lambda i: stampf(a, role, i))) if stampf else (lambda role: None)
    if stampf: stampf(a, 0, 0)
    attn_role(a, name, st(0))
    if stampf: stampf(a, 0, 'out')
    a(f's_branch {name}_end')
    a.label(Lb)
    if stampf: stampf(a, 1, 0)
    if 'noprio' not in OPT: a('s_setprio 3')
    b_role(a, name, st(1))
    if stampf: stampf(a, 1, 'out')
    a.label(name + '_end')
    a('s_endpgm')
    return kernel_desc(name, 256)
```

```python
from asmlib import *
from layout import *

L_A = 0
L_B = 32768
L_S = 159744
LDS_TOTAL = 163840
C_ATT = L_S + 0
C_B = L_S + 4
C_G1 = L_S + 8
C_G2 = L_S + 12
L_VOTE = L_S + 16
L_CS = L_S + 256
L_ST = L_S + 1024

F_X = 0
F_H2 = 256
F_O = 512
F_A = 768
F_H = 1024
N_FLAGS = 1088

SPIN_LIMIT = 1 << 20

def one_lane(a, fn):
    a('s_mov_b32 exec_lo, 1'); a('s_mov_b32 exec_hi, 0')
    fn()
    a('s_mov_b32 exec_lo, -1'); a('s_mov_b32 exec_hi, -1')

def subbar(a, cnt_addr, s_tgt, vt, st, n=4):
    L = a.newlabel('sb'); Lx = a.newlabel('sbx')
    a(f'v_mov_b32 v{vt}, {cnt_addr}'); a(f'v_mov_b32 v{vt+1}, 1')
    a(f's_add_u32 s{s_tgt}, s{s_tgt}, {n}')
    a('s_waitcnt lgkmcnt(0)')
    one_lane(a, lambda: a(f'ds_add_u32 v{vt}, v{vt+1}'))
    a(f's_mov_b32 s{st+1}, 0')
    a.label(L)
    a(f'ds_read_b32 v{vt+1}, v{vt}')
    a(f's_add_u32 s{st+1}, s{st+1}, 1')
    a('s_waitcnt lgkmcnt(0)')
    a(f'v_readfirstlane_b32 s{st}, v{vt+1}')
    a(f's_cmp_gt_u32 s{st+1}, {SPIN_LIMIT}')
    a(f's_cbranch_scc1 {Lx}')
    a(f's_cmp_lt_u32 s{st}, s{s_tgt}')
    a(f's_cbranch_scc1 {L}')
    a.label(Lx)

def arrive_flag(a, cnt_addr, flag_off_sreg, s_tok, srd_ws, vt, st, n=4):
    L = a.newlabel('arr')
    a('s_waitcnt vmcnt(0)')
    a(f'v_mov_b32 v{vt}, {cnt_addr}'); a(f'v_mov_b32 v{vt+1}, 1')
    one_lane(a, lambda: a(f'ds_add_rtn_u32 v{vt+1}, v{vt}, v{vt+1}'))
    a('s_waitcnt lgkmcnt(0)')
    a(f'v_readfirstlane_b32 s{st}, v{vt+1}')
    a('s_nop 3')
    a(f's_cmp_lg_u32 s{st}, {n-1}')
    a(f's_cbranch_scc1 {L}')
    store_flag(a, flag_off_sreg, s_tok, srd_ws, vt)
    a.label(L)

def store_flag(a, flag_off_sreg, s_tok, srd_ws, vt):
    a(f'v_mov_b32 v{vt}, 0'); a(f'v_mov_b32 v{vt+1}, s{s_tok}')
    one_lane(a, lambda: a(f'buffer_store_dword v{vt+1}, v{vt}, s[{srd_ws}:{srd_ws+3}], {flag_off_sreg} offen sc1'))

def poll(a, vaddr, smask, s_tok, srd_ws, vt, st):
    L = a.newlabel('poll'); Lx = a.newlabel('pollx')
    a(f's_mov_b32 s{st}, 0')
    a.label(L)
    a(f'buffer_load_dword v{vt}, v{vaddr}, s[{srd_ws}:{srd_ws+3}], 0 offen sc1')
    a(f's_add_u32 s{st}, s{st}, 1')
    a('s_waitcnt vmcnt(0)')
    a(f'v_cmp_ne_u32 vcc, s{s_tok}, v{vt}')
    a(f's_cmp_gt_u32 s{st}, {SPIN_LIMIT}')
    a(f's_cbranch_scc1 {Lx}')
    a(f's_and_b64 vcc, vcc, s[{smask}:{smask+1}]')
    a(f's_cbranch_scc1 {L}')
    a.label(Lx)
```

```python
import sys
from asmlib import *
from layout import *

PNAME = 'parallel_sum__softmax_full_mha__mixer_s_mlp__prompt'
EPS = 1e-5
CQ = (28 ** -0.5) * 1.4426950408889634

STAMP = False
OPTS = set(sys.argv[2:])
def stamp(a, idx):
    if STAMP:
        a(f's_memtime s[{80+2*idx}:{81+2*idx}]')
        if idx == 0: a('s_memrealtime s[72:73]')
def stamp_out(a, n, wgsel, dbgptr_off=72):
    if not STAMP: return
    L = a.newlabel('stampskip')
    a('s_waitcnt lgkmcnt(0) vmcnt(0)')
    a(f's_memtime s[{80+2*n}:{81+2*n}]')
    a('s_memrealtime s[70:71]')
    a(f's_load_dwordx2 s[78:79], s[0:1], {dbgptr_off}')
    a('s_waitcnt lgkmcnt(0)')
    a('s_mov_b32 s77, -1')
    for k, wg in enumerate(wgsel):
        a(f's_cmp_eq_u32 s2, {wg}')
        a(f's_cselect_b32 s77, {k}, s77')
    a('s_cmp_eq_u32 s77, -1')
    a(f's_cbranch_scc1 {L}')
    a('v_cmp_eq_u32 vcc, 0, v0')
    a('s_and_saveexec_b64 s[74:75], vcc')
    a(f's_cbranch_execz {L}')
    a('s_lshl_b32 s77, s77, 5')
    for k in range(1, n + 1):
        a(f's_sub_u32 s76, s{80+2*k}, s80')
        a('v_mov_b32 v250, s76')
        a(f's_add_u32 s76, s77, {4*(k-1)}')
        a('v_mov_b32 v251, s76')
        a('global_store_dword v251, v250, s[78:79]')
    for k, sreg in ((6, 72), (7, 70)):
        a(f'v_mov_b32 v250, s{sreg}')
        a(f's_add_u32 s76, s77, {4*k}')
        a('v_mov_b32 v251, s76')
        a('global_store_dword v251, v250, s[78:79]')
    a.label(L)

def gen_k2_stamp(a, role, i):
    if i != 'out':
        a(f's_memrealtime s[{80+2*i}:{81+2*i}]')
        return
    n = 10
    L = a.newlabel('stampskip')
    a('s_waitcnt lgkmcnt(0) vmcnt(0)')
    a(f's_memrealtime s[{80+2*n}:{81+2*n}]')
    a(f's_load_dwordx2 s[78:79], s[0:1], 72')
    a('s_waitcnt lgkmcnt(0)')
    a('s_cmp_lg_u32 s32, 0'); a(f's_cbranch_scc1 {L}')
    a('s_lshl_b32 s77, s2, 1'); a(f's_add_u32 s77, s77, {role}'); a('s_lshl_b32 s77, s77, 6'); a('s_add_u32 s77, s77, 4096')
    a('v_cmp_eq_u32 vcc, 0, v2')
    a('s_and_saveexec_b64 s[74:75], vcc')
    for k in range(0, n + 1):
        a(f'v_mov_b32 v250, s{80+2*k}')
        a(f's_add_u32 s76, s77, {4*k}')
        a('v_mov_b32 v251, s76')
        a('global_store_dword v251, v250, s[78:79]')
    a.label(L)

def gen_k1(a, name):
    kernel_head(a, name)
    Ldone = name + '_done'
    a('s_cmp_ge_u32 s2, 256')
    a(f's_cbranch_scc1 {Ldone}')
    stamp(a, 0)
    a('s_load_dwordx4 s[4:7], s[0:1], 0')
    a('s_load_dwordx2 s[8:9], s[0:1], 32')
    a('s_load_dwordx2 s[10:11], s[0:1], 80')
    a('s_and_b32 s34, s2, 7')
    a('s_lshr_b32 s35, s2, 3')
    a('s_and_b32 s24, s35, 3')
    a('s_lshl_b32 s24, s24, 2')
    a('s_and_b32 s36, s34, 3')
    a('s_add_u32 s24, s24, s36')
    a('s_lshr_b32 s25, s34, 2')
    a('s_lshl_b32 s25, s25, 3')
    a('s_lshr_b32 s36, s35, 2')
    a('s_add_u32 s25, s25, s36')
    a('s_lshr_b32 s26, s25, 2')
    a('v_and_b32 v1, 63, v0')
    a('v_lshrrev_b32 v5, 6, v0')
    a('s_nop 0')
    a('v_readfirstlane_b32 s29, v5')
    a('s_waitcnt lgkmcnt(0)')
    srd(a, 12, 4, 5, S * D * 2)
    srd(a, 20, 10, 11, WS_END)
    Lnz = name + '_nz'
    a('s_cmp_ge_u32 s2, 5'); a(f's_cbranch_scc1 {Lnz}')
    a('s_lshl_b32 s36, s2, 10'); a('v_lshlrev_b32 v5, 2, v0'); a('v_add_u32 v5, s36, v5'); a('v_mov_b32 v6, 0')
    a('buffer_store_dword v6, v5, s[20:23], 0 offen')
    a.label(Lnz)
    a('s_cmp_lt_u32 s25, 12')
    a('s_cselect_b32 s16, s6, s8')
    a('s_cselect_b32 s17, s7, s9')
    a('s_movk_i32 s27, 896')
    a('s_cselect_b32 s27, 2688, s27')
    a(f's_mov_b32 s18, {448*896}')
    a(f's_cselect_b32 s18, {448*2688}, s18')
    a('s_cselect_b32 s28, 56, 64')
    a('s_cselect_b32 s36, s25, 0')
    a('s_sub_u32 s37, s25, 12')
    a('s_cmp_lt_u32 s25, 12')
    a('s_cselect_b32 s36, s25, s37')
    a('s_mul_i32 s37, s36, 224')
    a('s_and_b32 s17, s17, 0xffff')
    a('s_mov_b32 s19, 0x20000')
    a('s_lshr_b32 s30, s29, 1')
    a('s_and_b32 s31, s29, 1')
    a('s_lshl_b32 s32, s29, 12')
    a('s_add_u32 s33, s32, 65536')
    a('v_lshrrev_b32 v5, 3, v1')
    a('s_lshl_b32 s38, s24, 7')
    a('s_lshl_b32 s39, s29, 5')
    a('s_add_u32 s38, s38, s39')
    a('v_add_u32 v5, s38, v5')
    a('s_movk_i32 s39, 896')
    a('v_mul_lo_u32 v5, v5, s39')
    a('v_and_b32 v6, 7, v1')
    a('v_lshrrev_b32 v7, 4, v1')
    a('v_xor_b32 v6, v6, v7')
    a('v_lshl_add_u32 v2, v6, 4, v5')
    a('v_xor_b32 v3, 64, v2')
    a('v_lshrrev_b32 v5, 4, v1')
    a('s_lshl_b32 s38, s29, 4')
    a('v_add_u32 v6, s38, v5')
    a('v_mul_lo_u32 v6, v6, s27')
    a('v_add_u32 v6, s37, v6')
    a('v_bfe_u32 v7, v1, 2, 2')
    a('v_xor_b32 v7, v7, v5')
    a('v_lshlrev_b32 v7, 2, v7')
    a('v_and_b32 v8, 3, v1')
    a('v_or_b32 v7, v7, v8')
    a('v_lshl_add_u32 v4, v7, 4, v6')
    def dma(stage):
        slot = stage % 4
        for u in range(4):
            a(f's_add_u32 m0, s32, {slot*16384 + u*1024}')
            a(f's_mov_b32 s36, {128*stage + 7168*u}')
            a(f'buffer_load_dwordx4 v{2 + (u & 1)}, s[12:15], s36 offen lds')
            a(f's_add_u32 m0, s33, {slot*16384 + u*1024}')
            a(f's_mul_i32 s36, s27, {64*stage + 4*u}')
            a(f'buffer_load_dwordx4 v4, s[16:19], s36 offen lds')
    stamp(a, 1)
    for st in range(4): dma(st)
    stamp(a, 2)
    a('s_lshl_b32 s40, s30, 1')
    a('s_add_u32 s41, s40, 1')
    a('s_add_u32 s40, s40, s31')
    a('s_sub_u32 s41, s41, s31')
    a('s_lshl_b32 s42, s31, 1')
    a('s_add_u32 s43, s42, 1')
    a('s_add_u32 s42, s42, s30')
    a('s_sub_u32 s43, s43, s30')
    a('v_and_b32 v5, 31, v1')
    a('v_lshrrev_b32 v6, 5, v1')
    a('v_bfe_u32 v7, v1, 1, 3')
    XA = 8
    for ks in range(4):
        a(f'v_add_u32 v18, {2*ks}, v6')
        a('v_xor_b32 v18, v18, v7')
        a('v_lshlrev_b32 v18, 4, v18')
        a('v_lshl_add_u32 v18, v5, 7, v18')
        a('s_lshl_b32 s36, s40, 12')
        a(f'v_add_u32 v{XA+ks}, s36, v18')
        a('s_lshl_b32 s36, s41, 12')
        a(f'v_add_u32 v{XA+4+ks}, s36, v18')
    WA = 16
    a('v_bfe_u32 v5, v1, 2, 2')
    a('v_lshl_add_u32 v18, v6, 3, v5')
    a('v_lshlrev_b32 v18, 8, v18')
    a('v_add_u32 v18, 65536, v18')
    a('v_bfe_u32 v7, v1, 4, 1')
    a('v_lshlrev_b32 v7, 5, v7')
    a('v_and_b32 v19, 3, v1')
    a('v_lshl_add_u32 v7, v19, 3, v7')
    for b, sn in ((0, 42), (1, 43)):
        a(f's_mul_i32 s36, s{sn}, s28')
        a('v_add_u32 v19, s36, v7')
        a('v_lshrrev_b32 v20, 6, v19')
        a('v_xor_b32 v20, v20, v5')
        a('v_lshlrev_b32 v20, 6, v20')
        a('v_and_b32 v19, 63, v19')
        a('v_add_u32 v19, v19, v20')
        a(f'v_add_u32 v{WA+b}, v18, v19')
    SETS = [dict(X=[20, 24], W=[28, 32]), dict(X=[36, 40], W=[44, 48])]
    SX, SXX, CS = 52, 56, 60
    ACC = 64
    for k in range(12): a(f'v_mov_b32 v{52+k}, 0')
    a('s_mov_b32 s44, 0x3f803f80')
    def reads(n):
        if 'noreads' in OPTS: return
        s_, ks = divmod(n, 4)
        slot = s_ % 4
        st = SETS[n % 2]
        for t in range(2):
            a(f'ds_read_b128 {vr(st["X"][t],4)}, v{XA+4*t+ks} offset:{slot*16384}')
        for b in range(2):
            a(f'ds_read_b64_tr_b16 {vr(st["W"][b],2)}, v{WA+b} offset:{slot*16384 + ks*4096}')
            a(f'ds_read_b64_tr_b16 {vr(st["W"][b]+2,2)}, v{WA+b} offset:{slot*16384 + ks*4096 + 1024}')
    def mainloop(swap):
        a('s_waitcnt vmcnt(24)')
        a('s_barrier')
        stamp(a, 3)
        reads(0)
        for n in range(28):
            s_, ks = divmod(n, 4)
            st = SETS[n % 2]
            if ks == 3 and s_ < 6:
                out = min(s_ + 3, 6) - (s_ + 1)
                a(f's_waitcnt vmcnt({8*out}) lgkmcnt(0)')
                a('s_barrier')
                if s_ + 4 <= 6 and 'nodma' not in OPTS: dma(s_ + 4)
                reads(n + 1)
            elif n < 27:
                reads(n + 1)
                a('s_waitcnt lgkmcnt(6)')
            else:
                a('s_waitcnt lgkmcnt(0)')
            dots = []
            for k in range(4): dots.append(f'v_dot2c_f32_bf16 v{SX+k}, s44, v{st["X"][0]+k}')
            for k in range(4): dots.append(f'v_dot2c_f32_bf16 v{SXX+k}, v{st["X"][0]+k}, v{st["X"][0]+k}')
            for k in range(4): dots.append(f'v_dot2c_f32_bf16 v{CS+k}, s44, v{st["W"][0]+k}')
            q = 0
            for t in range(2):
                for b in range(2):
                    d = ACC + (2*t + b) * 16
                    c = '0' if n == 0 else None
                    if swap: mfma(a, d, st['X'][t], st['W'][b], c)
                    else: mfma(a, d, st['W'][b], st['X'][t], c)
                    for _ in range(3):
                        if 'nodots' not in OPTS: a(dots[q])
                        q += 1
    Lv = name + '_v'; Lep = name + '_ep'
    a('s_cmp_eq_u32 s26, 2')
    a(f's_cbranch_scc1 {Lv}')
    mainloop(False)
    a(f's_branch {Lep}')
    a.label(Lv)
    mainloop(True)
    a.label(Lep)
    stamp(a, 4)
    a('s_nop 3')
    a(f'v_add_f32 v{SX}, v{SX}, v{SX+1}'); a(f'v_add_f32 v{SX+2}, v{SX+2}, v{SX+3}')
    a(f'v_add_f32 v{SXX}, v{SXX}, v{SXX+1}'); a(f'v_add_f32 v{SXX+2}, v{SXX+2}, v{SXX+3}')
    a(f'v_add_f32 v{CS}, v{CS}, v{CS+1}'); a(f'v_add_f32 v{CS+2}, v{CS+2}, v{CS+3}')
    a(f'v_add_f32 v{SX}, v{SX}, v{SX+2}'); a(f'v_add_f32 v{SXX}, v{SXX}, v{SXX+2}'); a(f'v_add_f32 v{CS}, v{CS}, v{CS+2}')
    a(f'v_mov_b32 v20, v{SX}'); a(f'v_mov_b32 v21, v{SXX}'); a(f'v_mov_b32 v22, v{CS}')
    a('s_nop 1')
    a(f'v_permlane32_swap_b32 v20, v{SX}'); a(f'v_permlane32_swap_b32 v21, v{SXX}'); a(f'v_permlane32_swap_b32 v22, v{CS}')
    a('s_nop 1')
    a(f'v_add_f32 v20, v20, v{SX}'); a(f'v_add_f32 v21, v21, v{SXX}'); a(f'v_add_f32 v22, v22, v{CS}')
    a(f'v_mul_f32 v20, {f32(1/448)}, v20')
    a(f'v_mul_f32 v21, {f32(1/448)}, v21')
    a('v_fma_f32 v21, -v20, v20, v21')
    a('v_max_f32 v21, 0, v21')
    a(f'v_add_f32 v23, {f32(EPS)}, v21')
    a('v_rsq_f32 v23, v23')
    a('s_nop 0')
    a('v_mul_f32 v24, v23, v23')
    a(f'v_mov_b32 v25, {f32(EPS)}')
    a('v_fma_f32 v24, v21, v24, v25')
    a('v_rsq_f32 v24, v24')
    a('s_nop 0')
    a('s_cmp_eq_u32 s26, 3')
    a('s_cselect_b64 vcc, -1, 0')
    a('v_mov_b32 v25, 1.0')
    a('v_cndmask_b32 v24, v25, v24, vcc')
    a('s_cmp_eq_u32 s26, 0')
    a(f's_cselect_b32 s36, {f32(CQ)}, 1.0')
    a('v_mul_f32 v24, s36, v24')
    a('v_mul_f32 v24, v24, v23')
    a('v_mul_f32 v25, v24, v20')
    a('v_sub_f32 v25, 0, v25')
    STL = 131072
    a('v_and_b32 v5, 31, v1')
    a('s_lshl_b32 s36, s40, 7')
    a('v_lshl_add_u32 v26, v5, 2, s36')
    a(f'v_add_u32 v26, {STL}, v26')
    a('ds_write_b32 v26, v24')
    a('ds_write_b32 v26, v25 offset:512')
    a('s_lshl_b32 s36, s42, 7')
    a('v_lshl_add_u32 v27, v5, 2, s36')
    a(f'v_add_u32 v27, {STL}, v27')
    a('ds_write_b32 v27, v22 offset:1024')
    Lns = name + '_nostats'
    a('s_cmp_lg_u32 s25, 12')
    a(f's_cbranch_scc1 {Lns}')
    a('s_lshl_b32 s36, s24, 7')
    a('s_lshl_b32 s37, s40, 5')
    a('s_add_u32 s36, s36, s37')
    a('v_add_u32 v28, s36, v5')
    a('v_lshlrev_b32 v28, 3, v28')
    a('v_mov_b32 v30, v20'); a('v_mov_b32 v31, v23')
    a(f's_mov_b32 s36, {WS_STATS}')
    a('buffer_store_dwordx2 v[30:31], v28, s[20:23], s36 offen')
    a.label(Lns)
    a('s_waitcnt lgkmcnt(0)')
    a('s_barrier')
    stamp(a, 5)
    a('v_lshlrev_b32 v2, 4, v1')
    a('v_lshrrev_b32 v6, 5, v1')
    a('v_and_b32 v5, 31, v1')
    Lev = name + '_epv'; Lew = name + '_epw'
    MT = [40, 41]; NT = [42, 43]
    T = 128
    a('s_cmp_eq_u32 s26, 2'); a(f's_cbranch_scc1 {Lev}')
    for t in range(2):
        a(f's_lshl_b32 s36, s{MT[t]}, 7')
        a('v_lshl_add_u32 v7, v5, 2, s36')
        a(f'v_add_u32 v7, {STL}, v7')
        a(f'ds_read_b32 v{20+2*t}, v7')
        a(f'ds_read_b32 v{24+2*t}, v7 offset:512')
    for b in range(2):
        a(f's_lshl_b32 s36, s{NT[b]}, 7')
        a('v_lshl_add_u32 v7, v6, 4, s36')
        a(f'v_add_u32 v7, {STL}, v7')
        for q in range(4):
            a(f'ds_read_b128 {vr(T+16*b+4*q,4)}, v7 offset:{1024+32*q}')
    a('s_waitcnt lgkmcnt(0)')
    def affine_dt(t, b):
        acc = ACC + (2*t + b) * 16
        for k in range(8):
            a(f'v_pk_mul_f32 {vr(T+32+2*k,2)}, {vr(T+16*b+2*k,2)}, {vr(24+2*t,2)} op_sel_hi:[1,0]')
        for k in range(8):
            a(f'v_pk_fma_f32 {vr(acc+2*k,2)}, {vr(acc+2*k,2)}, {vr(20+2*t,2)}, {vr(T+32+2*k,2)} op_sel_hi:[1,0,1]')
    def pack(acc, dst):
        for k in range(8): a(f'v_cvt_pk_bf16_f32 v{dst+k}, v{acc+2*k}, v{acc+2*k+1}')
    a('s_cmp_eq_u32 s26, 3'); a(f's_cbranch_scc1 {Lew}')
    a('s_cmp_eq_u32 s26, 0')
    a(f's_mov_b32 s45, {WS_KF}')
    a(f's_cselect_b32 s45, {WS_QF}, s45')
    a('s_cselect_b32 s46, 0, 0x3f803f80')
    a('s_cselect_b32 s47, 0, 0x3f80')
    for t in range(2):
        for b in range(2):
            acc = ACC + (2*t + b) * 16
            P = T + 48 + 8 * ((2*t+b) % 2)
            affine_dt(t, b)
            pack(acc, P)
            a('s_mov_b32 exec_lo, 0')
            a(f'v_mov_b32 v{P+6}, s46')
            a(f'v_mov_b32 v{P+7}, s47')
            a('s_mov_b32 exec_lo, -1')
            a('s_and_b32 s36, s25, 3'); a('s_lshl_b32 s36, s36, 2'); a(f's_add_u32 s36, s36, s{NT[b]}')
            a('s_lshl_b32 s36, s36, 17')
            a('s_lshl_b32 s37, s24, 2'); a(f's_add_u32 s37, s37, s{MT[t]}'); a('s_lshl_b32 s37, s37, 11')
            a('s_add_u32 s36, s36, s37'); a('s_add_u32 s36, s36, s45')
            a(f'buffer_store_dwordx4 {vr(P,4)}, v2, s[20:23], s36 offen')
            a(f'buffer_store_dwordx4 {vr(P+4,4)}, v2, s[20:23], s36 offen offset:1024')
    a(f's_branch {name}_fin')
    a.label(Lew)
    C0, C1, ONE = T + 64, T + 66, T + 68
    for r_, val in ((C0, f32(GELU_C0)), (C1, f32(GELU_C1)), (ONE, '1.0')):
        a(f'v_mov_b32 v{r_}, {val}'); a(f'v_mov_b32 v{r_+1}, {val}')
    a('s_and_b32 s45, s25, 3')
    a('s_lshr_b32 s46, s45, 1'); a('s_add_u32 s46, s46, 1')
    a('s_sub_u32 s47, 0, s46')
    a('s_bitcmp1_b32 s45, 0')
    a('s_cselect_b32 s46, s47, s46')
    for t in range(2):
        a('s_lshl_b32 s36, s24, 7'); a(f's_lshl_b32 s37, s{MT[t]}, 5'); a('s_add_u32 s36, s36, s37'); a('s_add_u32 s36, s36, s46')
        a('v_add_u32 v7, s36, v5')
        a('v_cmp_gt_u32 vcc, 2048, v7')
        a('v_and_b32 v7, 2047, v7')
        a('v_lshrrev_b32 v8, 5, v7')
        a('s_movk_i32 s36, 28672')
        a('v_mul_lo_u32 v8, v8, s36')
        a('v_and_b32 v7, 31, v7')
        a('v_lshl_add_u32 v7, v6, 5, v7')
        a(f'v_lshl_add_u32 v{10+t}, v7, 4, v8')
        a(f'v_cndmask_b32 v{12+t}, 0, -1, vcc')
    for t in range(2):
        for b in range(2):
            acc = ACC + (2*t + b) * 16
            P = T + 48 + 8 * ((2*t+b) % 2)
            affine_dt(t, b)
            gelu16(a, acc, T + 72, C0, C1, ONE)
            pack(acc, P)
            for k in range(8): a(f'v_and_b32 v{P+k}, v{P+k}, v{12+t}')
            a('s_mul_i32 s36, s45, 7'); a(f's_lshl_b32 s37, s{NT[b]}, 1'); a('s_add_u32 s36, s36, s37')
            a('s_lshl_b32 s36, s36, 10'); a(f's_add_u32 s36, s36, {WS_HS}')
            a(f'buffer_store_dwordx4 {vr(P,4)}, v{10+t}, s[20:23], s36 offen')
            Ls = a.newlabel('k1skip')
            a(f's_cmp_eq_u32 s{NT[b]}, 3'); a(f's_cbranch_scc1 {Ls}')
            a(f'buffer_store_dwordx4 {vr(P+4,4)}, v{10+t}, s[20:23], s36 offen offset:1024')
            a.label(Ls)
    a(f's_branch {name}_fin')
    a.label(Lev)
    for b in range(2):
        a(f's_lshl_b32 s36, s{NT[b]}, 7')
        a('v_lshl_add_u32 v7, v5, 2, s36')
        a(f'v_add_u32 v7, {STL}, v7')
        a(f'ds_read_b32 v{20+2*b}, v7 offset:1024')
    for t in range(2):
        a(f's_lshl_b32 s36, s{MT[t]}, 7')
        a('v_lshl_add_u32 v7, v6, 4, s36')
        a(f'v_add_u32 v7, {STL}, v7')
        for q in range(4):
            a(f'ds_read_b128 {vr(T+32*t+4*q,4)}, v7 offset:{32*q}')
            a(f'ds_read_b128 {vr(T+32*t+16+4*q,4)}, v7 offset:{512+32*q}')
    a('s_waitcnt lgkmcnt(0)')
    a('v_cmp_eq_u32 vcc, 28, v5')
    for t in range(2):
        for b in range(2):
            acc = ACC + (2*t + b) * 16
            P = T + 80 + 8 * ((2*t+b) % 2)
            X = T + 64
            for k in range(8):
                a(f'v_pk_mul_f32 {vr(X+2*k,2)}, {vr(T+32*t+16+2*k,2)}, {vr(20+2*b,2)} op_sel_hi:[1,0]')
            for k in range(8):
                a(f'v_pk_fma_f32 {vr(acc+2*k,2)}, {vr(acc+2*k,2)}, {vr(T+32*t+2*k,2)}, {vr(X+2*k,2)}')
            pack(acc, P)
            a('s_and_saveexec_b64 s[48:49], vcc')
            for k in range(8): a(f'v_mov_b32 v{P+k}, s44')
            a('s_mov_b64 exec, s[48:49]')
            a('s_and_b32 s36, s25, 3'); a('s_lshl_b32 s36, s36, 2'); a(f's_add_u32 s36, s36, s{NT[b]}')
            a('s_lshl_b32 s36, s36, 17')
            a('s_lshl_b32 s37, s24, 2'); a(f's_add_u32 s37, s37, s{MT[t]}'); a('s_lshl_b32 s37, s37, 11')
            a('s_add_u32 s36, s36, s37'); a(f's_add_u32 s36, s36, {WS_VF}')
            a(f'buffer_store_dwordx4 {vr(P,4)}, v2, s[20:23], s36 offen')
            a(f'buffer_store_dwordx4 {vr(P+4,4)}, v2, s[20:23], s36 offen offset:1024')
    a.label(name + '_fin')
    stamp_out(a, 6, [0, 1, 100, 255, 7, 64, 128, 250])
    a.label(Ldone)
    a('s_endpgm')
    return kernel_desc(name, 256)

def build(kernels, out):
    a = Asm()
    hdr = open('cdna_kernels/' + PNAME + '.s.ref').read().split('\n')
    head = [l for l in hdr if l.startswith(';') and '@launch' not in l and 'Override' not in l and 'grid=ceil' not in l]
    head = head[:head.index([l for l in head if 'd_ws' in l][0]) + 1]
    txt = '\n'.join(head) + '\n'
    for (nm, gen, grid, block, lds) in kernels:
        txt += f'; @launch kernel={nm} grid=({grid},1,1) block=({block},1,1) lds={lds}\n'
    txt += '.amdgcn_target "amdgcn-amd-amdhsa--gfx950"\n'
    descs = ''
    for (nm, gen, grid, block, lds) in kernels:
        descs += gen(a, nm)
    txt += a.text() + descs
    open(out, 'w').write(txt)

if __name__ == '__main__':
    if 'stamp' in sys.argv: STAMP = True
    from gen_attn import gen_attn
    from gen_b import gen_g1, gen_g2, gen_g3
    import gen_k2
    if 'five' in sys.argv:
        ks = [('k1_kernel', gen_k1, 256, 256, 133120),
          ('attn_kernel', gen_attn, 256, 256, 57600),
          ('g1_kernel', gen_g1, 224, 256, 57344 + 16384),
          ('g2_kernel', gen_g2, 224, 256, 114688 + 512),
          ('g3_kernel', gen_g3, 224, 256, 131072)]
    else:
        stf = gen_k2_stamp if STAMP else None
        gen_k2.OPT = set(sys.argv[2:])
        if 'plainK' in sys.argv: gen_k2.SCK = ''
        if 'plainL' in sys.argv: gen_k2.SCL = ''
        if 'plainS' in sys.argv: gen_k2.SC = ''
        ks = [('k1_kernel', gen_k1, 256, 256, 133120),
          ('k2_kernel', lambda a, n: gen_k2.gen_k2(a, n, stf), 256, 512, 163840)]
    build(ks, sys.argv[1] if len(sys.argv) > 1 else 'out.s')
```

```python
from mb import HDR, meta
import subprocess
def kern(name, body):
    return f'''
.text
.globl {name}
.p2align 8
.type {name},@function
{name}:
  s_load_dwordx2 s[4:5], s[0:1], 72
  s_waitcnt lgkmcnt(0)
  v_mov_b32 v124, v0
  s_mov_b32 s20, 0
  s_barrier
L_{name}:
  s_memtime s[10:11]
  s_waitcnt lgkmcnt(0)
{body}
  s_memtime s[12:13]
  s_waitcnt lgkmcnt(0)
  s_sub_u32 s14, s12, s10
  s_cmp_eq_u32 s20, 0
  s_cselect_b32 s30, s14, s30
  s_cmp_eq_u32 s20, 1
  s_cselect_b32 s31, s14, s31
  s_cmp_eq_u32 s20, 2
  s_cselect_b32 s32, s14, s32
  s_add_u32 s20, s20, 1
  s_cmp_lt_u32 s20, 3
  s_cbranch_scc0 X_{name}
  s_branch L_{name}
X_{name}:
  s_cmp_lg_u32 s2, 0
  s_cbranch_scc1 E_{name}
  v_lshrrev_b32 v125, 6, v124
  v_lshlrev_b32 v125, 2, v125
  v_and_b32 v127, 63, v124
  v_cmp_eq_u32 vcc, 0, v127
  s_and_saveexec_b64 s[16:17], vcc
  v_mov_b32 v126, s30
  global_store_dword v125, v126, s[4:5]
  v_mov_b32 v126, s31
  global_store_dword v125, v126, s[4:5] offset:32
  v_mov_b32 v126, s32
  global_store_dword v125, v126, s[4:5] offset:64
E_{name}:
  s_endpgm
.section .rodata,"a"
.p2align 6
.amdhsa_kernel {name}
  .amdhsa_next_free_vgpr 256
  .amdhsa_next_free_sgpr 102
  .amdhsa_accum_offset 256
  .amdhsa_group_segment_fixed_size 0
  .amdhsa_kernarg_size 88
  .amdhsa_user_sgpr_count 2
  .amdhsa_user_sgpr_kernarg_segment_ptr 1
  .amdhsa_system_sgpr_workgroup_id_x 1
.end_amdhsa_kernel
'''
def fm(n): return ''.join(f'  v_fma_f32 v{16+i%16}, v{40+i%16}, v{40+i%16}, v{16+i%16}\n' for i in range(n))
def mf(n, k):
    s = ''
    for i in range(n):
        s += f'  v_mfma_f32_32x32x16_bf16 v[{128+16*(i%4)}:{143+16*(i%4)}], v[56:59], v[60:63], v[{128+16*(i%4)}:{143+16*(i%4)}]\n' + fm(k)
    return s
def nops(n): return '  s_nop 0\n' * n
K = {'fm16k_kernel': fm(2048), 'fm48k_kernel': fm(6144), 'mf4_kernel': mf(400, 4), 'mf0_kernel': mf(400, 0), 'nop16k_kernel': nops(4096)}
s = HDR
for n, b in K.items(): s += kern(n, b)
s += meta(list(K), {n: 256 for n in K})
open('mb13.s', 'w').write(s)
subprocess.check_call(['clang', '-x', 'assembler', '-target', 'amdgcn-amd-amdhsa', '-mcpu=gfx950', 'mb13.s', '-o', 'mb13.co'])
open('mb13.sh', 'w').write('for k in ' + ' '.join(K) + '; do\n for f in 1 0; do echo "$k flush=$f"; ./bench4 mb13.co $k $f; done\ndone\n')
```
